```python
import torch

def _softmax(x, axis=-1):
    return torch.softmax(x, dim=axis)
def _gelu(x):
    return torch.nn.functional.gelu(x, approximate="tanh")
def _silu(x):
    return torch.nn.functional.silu(x)
def _sigmoid(x):
    return torch.sigmoid(x)
def _layernorm(x, axis=-1, eps=1e-5):
    m = x.mean(dim=axis, keepdim=True)
    v = x.var(dim=axis, keepdim=True, unbiased=False)
    return (x - m) / torch.sqrt(v + eps)
def _scatter_add(tgt, idx, src, axis=0):
    return tgt.clone().index_add_(axis, idx, src)
def _segment_sum(src, seg, n):
    out = torch.zeros((n,) + src.shape[1:], dtype=src.dtype)
    return out.index_add_(0, seg, src)
def _pad(x, pw):
    flat = tuple(v for pair in reversed(pw) for v in pair)
    return torch.nn.functional.pad(x, flat)

kernel_name = 'parallel_sum__softmax_full_mha__dense_activation_silu__prompt'

def setup_inputs():

    _w = (lambda a: (lambda t: t.to(torch.bfloat16) if t.is_floating_point() else t)(torch.as_tensor(a)))
    def _A_setup():
        B, S, D = 1, 2048, 640
        return {
            "x": _w((lambda *s: torch.randn(*s, dtype=torch.bfloat16) * 0.05)(B, S, D)),
            "wqkv": _w((lambda *s: torch.randn(*s, dtype=torch.bfloat16) * 0.05)(D, 3 * D)),
            "wo": _w((lambda *s: torch.randn(*s, dtype=torch.bfloat16) * 0.05)(D, D)),
        }
    _A_in = _A_setup()

    def _B_setup():
        B, S, D, F = 1, 2048, 640, 1728
        return {
            "x": _w((lambda *s: torch.randn(*s, dtype=torch.bfloat16) * 0.05)(B, S, D)),
            "w1": _w((lambda *s: torch.randn(*s, dtype=torch.bfloat16) * 1.6)(D, F) * (D ** -0.5)),
            "w2": _w((lambda *s: torch.randn(*s, dtype=torch.bfloat16) * 0.2)(F, D) * (F ** -0.5)),
        }
    _B_in = _B_setup()

    return {
        "A_x": _A_in["x"],
        "A_wqkv": _A_in["wqkv"],
        "A_wo": _A_in["wo"],
        "B_x": _B_in["x"],
        "B_w1": _B_in["w1"],
        "B_w2": _B_in["w2"],
    }

def reference(A_x, A_wqkv, A_wo, B_x, B_w1, B_w2):
    def _A_ref(x, wqkv, wo):
        B, S, D = x.shape
        H = 32; Dh = D // H
        qkv = (lambda x, *d: x.permute(*d))((x @ wqkv).reshape(B, S, 3, H, Dh), 2, 0, 3, 1, 4)
        q, k, v = qkv[0], qkv[1], qkv[2]
        scale = Dh ** -0.5
        scores = torch.einsum("bhqd,bhkd->bhqk", q, k) * scale
        p = _softmax(scores, axis=-1)
        o = torch.einsum("bhqk,bhkd->bhqd", p, v)
        return (lambda x, *d: x.permute(*d))(o, 0, 2, 1, 3).reshape(B, S, D) @ wo

    def _B_ref(x, w1, w2):
        h = torch.einsum("bsd,df->bsf", x, w1)
        h = _silu(h)
        out = torch.einsum("bsf,fd->bsd", h, w2)
        return out

    x = A_x
    xn = _layernorm(x, axis=-1)
    return x + _A_ref(xn, A_wqkv, A_wo) + _B_ref(xn, B_w1, B_w2)
```

```python
import re

TRANS = ("v_exp_f32", "v_log_f32", "v_rcp_f32", "v_rsq_f32", "v_sqrt_f32", "v_sin_f32", "v_cos_f32",
         "v_exp_f16", "v_rcp_iflag_f32")

_reg_re = re.compile(r"^-?(?:abs\()?([vas])(?:(\d+)|\[(\d+):(\d+)\])\)?$")


def regs_of(tok):
    tok = tok.strip()
    if tok in ("vcc", "vcc_lo", "vcc_hi"):
        return [("s", "vcc")]
    if tok in ("exec", "exec_lo", "exec_hi"):
        return [("s", "exec")]
    if tok == "m0":
        return [("s", "m0")]
    m = _reg_re.match(tok)
    if not m:
        return []
    k = m.group(1)
    if m.group(2) is not None:
        return [(k, int(m.group(2)))]
    return [(k, i) for i in range(int(m.group(3)), int(m.group(4)) + 1)]


class Ins:
    __slots__ = ("text", "op", "defs", "uses", "kind", "srcc", "srcab", "passes", "drange", "label",
                 "target", "nop", "store_data", "is_lds_dma", "is_dpp")

    def __init__(self, text):
        self.text = text
        self.label = None
        self.target = None
        self.nop = 1
        self.defs = set()
        self.uses = set()
        self.srcc = set()
        self.srcab = set()
        self.passes = 0
        self.drange = None
        self.store_data = set()
        self.is_lds_dma = False
        self.is_dpp = False
        t = text.split(";")[0].strip()
        if t.endswith(":"):
            self.kind = "label"
            self.label = t[:-1]
            self.op = ""
            self.nop = 0
            return
        if t.startswith(".") or t == "":
            self.kind = "dir"
            self.op = ""
            self.nop = 0
            return
        parts = t.split(None, 1)
        op = parts[0]
        self.op = op
        rest = parts[1] if len(parts) > 1 else ""
        ops = [o.strip() for o in rest.split(",")] if rest else []
        mods = ""
        if ops:
            last = ops[-1].split(None, 1)
            ops[-1] = last[0] if last else ""
            mods = last[1] if len(last) > 1 else ""
        R = [regs_of(o) for o in ops]
        if op == "s_nop":
            self.kind = "nop"
            self.nop = int(ops[0], 0) + 1
        elif op.startswith("v_mfma"):
            self.kind = "mfma"
            self.defs = set(R[0])
            self.srcab = set(R[1]) | set(R[2])
            self.srcc = set(R[3])
            self.uses = self.srcab | self.srcc
            self.drange = tuple(R[0])
            self.passes = 8 if "32x32" in op else 4
        elif op.startswith("v_"):
            self.kind = "valu"
            if op.startswith("v_dot"):
                self.kind = "dot"
                self.defs = set(R[0])
                if op.startswith("v_dot2c"):
                    self.srcab = set(R[1]) | set(R[2])
                    self.srcc = set(R[0])
                else:
                    self.srcab = set(R[1]) | set(R[2])
                    self.srcc = set(R[3])
                self.uses = self.srcab | self.srcc
            elif op.startswith("v_permlane"):
                self.defs = set(R[0]) | set(R[1])
                self.uses = set(R[0]) | set(R[1])
            elif op.startswith("v_cmp"):
                self.defs = set(R[0])
                if op.startswith("v_cmpx"):
                    self.defs.add(("s", "exec"))
                for r in R[1:]:
                    self.uses |= set(r)
            elif op.startswith(("v_add_co", "v_sub_co", "v_addc_co", "v_subb_co", "v_mad_u64")):
                self.defs = set(R[0]) | set(R[1])
                for r in R[2:]:
                    self.uses |= set(r)
            elif op == "v_nop":
                pass
            else:
                self.defs = set(R[0])
                for r in R[1:]:
                    self.uses |= set(r)
                if op.startswith(("v_fmac", "v_writelane")):
                    self.uses |= set(R[0])
            if "dpp" in op or "row_" in mods or "quad_perm" in mods:
                self.is_dpp = True
        elif op.startswith("ds_"):
            self.kind = "ds"
            if op.startswith(("ds_read", "ds_bpermute", "ds_permute", "ds_swizzle")) or "rtn" in op:
                self.defs = set(R[0])
                for r in R[1:]:
                    self.uses |= set(r)
            else:
                for r in R:
                    self.uses |= set(r)
        elif op.startswith(("buffer_", "global_")):
            self.kind = "vmem"
            lds = " lds" in (" " + mods) or "load_lds" in op
            if lds:
                self.is_lds_dma = True
                for r in R:
                    self.uses |= set(r)
                self.uses.add(("s", "m0"))
            elif "load" in op:
                self.defs = set(R[0])
                for r in R[1:]:
                    self.uses |= set(r)
            elif "atomic" in op and "sc0" in mods:
                self.defs = set(R[0])
                for r in R:
                    self.uses |= set(r)
            else:
                for r in R:
                    self.uses |= set(r)
                if "x4" in op or "x3" in op:
                    self.store_data = set(R[0]) if op.startswith("buffer_") else set(R[1])
        elif op.startswith("s_"):
            self.kind = "salu"
            if op.startswith(("s_branch", "s_cbranch")):
                self.kind = "branch"
                self.target = ops[0]
            elif op.startswith(("s_waitcnt", "s_barrier", "s_endpgm", "s_setprio", "s_sleep")):
                self.kind = "misc"
            elif op.startswith("s_cmp"):
                for r in R:
                    self.uses |= set(r)
            else:
                if R:
                    self.defs = set(R[0])
                for r in R[1:]:
                    self.uses |= set(r)
                if "saveexec" in op:
                    self.defs.add(("s", "exec"))
        else:
            raise ValueError("unknown instruction: " + text)


def vr(s):
    return {x for x in s if x[0] in "va"}


def sr(s):
    return {x for x in s if x[0] == "s"}


def need(p, c):
    n = 0
    cvalu = c.kind in ("valu", "dot")
    if p.kind in ("valu",):
        pd = vr(p.defs)
        if c.kind == "mfma" and pd & c.uses:
            n = max(n, 2)
        if p.op.startswith(TRANS) and (cvalu or c.kind == "mfma") and pd & c.uses and not c.op.startswith(TRANS):
            n = max(n, 1)
        if c.op.startswith("v_permlane") and pd & c.uses:
            n = max(n, 2)
        if c.op.startswith(("v_readlane", "v_readfirstlane")) and pd & c.uses:
            n = max(n, 1)
        if c.is_dpp and pd & c.uses:
            n = max(n, 2)
        ps = sr(p.defs)
        if ps:
            if c.kind == "vmem" and ps & c.uses:
                n = max(n, 5)
            if cvalu and ps & c.uses:
                n = max(n, 4 if c.op.startswith(("v_readlane", "v_writelane")) else 2)
            if ("s", "exec") in ps and (c.kind == "mfma" or c.op.startswith(("v_permlane", "v_read", "v_write"))):
                n = max(n, 4)
            if ("s", "exec") in ps and c.is_dpp:
                n = max(n, 5)
            if c.kind in ("salu", "branch") and (ps & c.uses or (c.op.startswith("s_cbranch_vcc") and ("s", "vcc") in ps)):
                n = max(n, 1)
    if p.kind == "dot":
        pd = p.defs
        if c.kind == "dot" and c.op == p.op:
            if pd & c.srcab:
                n = max(n, 3)
        elif pd & (c.uses | c.defs):
            n = max(n, 3)
    if p.kind == "mfma":
        pd = p.defs
        if c.kind == "mfma":
            if pd & c.srcab:
                n = max(n, p.passes + 4)
            if pd & c.srcc:
                if not (tuple(sorted(c.srcc)) == tuple(sorted(pd)) and c.passes == p.passes):
                    n = max(n, p.passes + 2)
            elif pd & c.defs:
                n = max(n, p.passes + 2)
        elif cvalu:
            if pd & (c.uses | c.defs):
                n = max(n, p.passes + 4)
            if p.srcc & c.defs:
                n = max(n, p.passes - 1)
        elif c.kind in ("vmem", "ds"):
            if pd & (c.uses | c.defs):
                n = max(n, p.passes + 4)
    if p.kind == "salu" and ("s", "m0") in p.defs and c.is_lds_dma:
        n = max(n, 1)
    if p.store_data and (p.store_data & c.defs):
        n = max(n, 2 if cvalu else 1)
    return n


class Kernel:
    def __init__(self, name):
        self.name = name
        self.lines = []
        self.uid = 0

    def __call__(self, s):
        for l in s.split("\n"):
            l = l.strip()
            if l:
                self.lines.append(l)

    def c(self, s):
        self.lines.append("; " + s)

    def newlabel(self, base):
        self.uid += 1
        return f"L_{self.name}_{base}_{self.uid}"

    def finish(self, verbose=False):
        ins = []
        for l in self.lines:
            if l.startswith(";"):
                i = Ins("")
                i.text = l
                ins.append(i)
            else:
                ins.append(Ins(l))
        inserted = 0

        def maps():
            labels = {x.label: k for k, x in enumerate(ins) if x.label}
            brs = {}
            for k, x in enumerate(ins):
                if x.target is not None and x.target in labels:
                    brs.setdefault(labels[x.target], []).append(k)
            return brs

        changed = True
        while changed:
            changed = False
            brs = maps()
            k = 0
            while k < len(ins):
                c = ins[k]
                if c.kind in ("label", "dir", "nop"):
                    k += 1
                    continue
                worst = 0
                stack = [(k - 1, 0, False)]
                seen = set()
                while stack:
                    j, st, viabr = stack.pop()
                    while j >= 0 and st < 20:
                        if (j, st, viabr) in seen:
                            break
                        seen.add((j, st, viabr))
                        p = ins[j]
                        if p.kind == "label":
                            for b in brs.get(j, []):
                                stack.append((b, st, True))
                            j -= 1
                            viabr = False
                            continue
                        if p.kind == "dir":
                            j -= 1
                            continue
                        if p.op in ("s_branch", "s_endpgm") and not viabr:
                            break
                        viabr = False
                        r = need(p, c)
                        if r > st:
                            worst = max(worst, r - st)
                        st += p.nop
                        j -= 1
                if worst > 0:
                    n = Ins(f"s_nop {worst - 1}")
                    ins.insert(k, n)
                    inserted += 1
                    changed = True
                    if verbose:
                        print(f"[{self.name}] inserted s_nop {worst-1} before: {c.text}")
                    brs = maps()
                    k += 1
                k += 1
        self.inserted = inserted
        out = []
        for x in ins:
            if x.kind == "label" or x.text.startswith("."):
                out.append(x.text)
            else:
                out.append("    " + x.text)
        return "\n".join(out)
```

```python
from asmlib import Kernel

NAME = "parallel_sum__softmax_full_mha__dense_activation_silu__prompt"

QP = 0x0
KP = 0x280000
VP = 0x500000
HP = 0x780000
OP = 0xE40000
RES = 0x10C0000
W2T = 0x15C0000
WOT = 0x17DC000
WS_END = 0x18A4000
WS_BYTES = 268435456

X_BYTES = 2048 * 640 * 2
WQKV_BYTES = 640 * 1920 * 2
WO_BYTES = 640 * 640 * 2
W1_BYTES = 640 * 1728 * 2
W2_BYTES = 1728 * 640 * 2

LOG2E = 1.4426950408889634


def f32(x):
    import struct
    return "0x%08x" % struct.unpack("<I", struct.pack("<f", x))[0]


def srd(k, d, ptr, nbytes):
    k(f"""s_mov_b32 s{d}, s{ptr}
    s_mov_b32 s{d+1}, s{ptr+1}
    s_mov_b32 s{d+2}, {nbytes}
    s_mov_b32 s{d+3}, 0x00020000""")


def vr(a, n):
    return f"v[{a}:{a+n-1}]"


def header(name):
    return f""".text
.globl {name}
.p2align 8
.type {name},@function
{name}:
"""


def descriptor(name, vgpr, sgpr=96, accum=None):
    if accum is None:
        accum = (vgpr + 3) // 4 * 4
        accum = min(accum, 256)
    return f""".section .rodata,"a"
.p2align 6
.amdhsa_kernel {name}
  .amdhsa_next_free_vgpr {vgpr}
  .amdhsa_next_free_sgpr {sgpr}
  .amdhsa_accum_offset {accum}
  .amdhsa_group_segment_fixed_size 0
  .amdhsa_kernarg_size 72
  .amdhsa_user_sgpr_count 2
  .amdhsa_user_sgpr_kernarg_segment_ptr 1
  .amdhsa_system_sgpr_workgroup_id_x 1
  .amdhsa_float_denorm_mode_32 3
.end_amdhsa_kernel
"""
```

```python
from common import *

SLOT = 49152
NST = 10
STAT = 3 * SLOT
ST_ROW = STAT
ST_COL = STAT + 4096
ST_FIN = STAT + 6144
K1_LDS = STAT + 6144 + 4096

sX, sW, sWS = 8, 12, 16
sWV, sRB, sCT, sLDW, sRH, sCH, sPART, sXI = 20, 21, 22, 23, 24, 25, 26, 27
sM0X, sM0W, sSOX, sSOW, sDU, sONE = 28, 29, 30, 31, 32, 33
sT0, sT1, sT2, sT3 = 34, 35, 36, 37
vL = 1
vXA = 2
vWA = 6
vDX = 14
vDW = 16
vSX = 17
vCS = 21
vT = 23
F = [32, 48]
ACC = 64


def dma_stage(k, st):
    slot = st % 3
    g = []
    g.append(f"s_add_u32 m0, s{sM0X}, {slot*SLOT}\ns_mov_b32 s{sSOX}, {st*128}\n"
             f"buffer_load_dwordx4 v{vDX}, s[{sX}:{sX+3}], s{sSOX} offen lds")
    g.append(f"buffer_load_dwordx4 v{vDX+1}, s[{sX}:{sX+3}], s{sSOX} offen offset:1024 lds")
    g.append(f"s_add_u32 m0, s{sM0W}, {slot*SLOT}\ns_mul_i32 s{sSOW}, s{sLDW}, {st*64}\n"
             f"buffer_load_dwordx4 v{vDW}, s[{sW}:{sW+3}], s{sSOW} offen lds")
    for u in range(1, 4):
        g.append(f"s_add_u32 s{sSOW}, s{sSOW}, s{sDU}\n"
                 f"buffer_load_dwordx4 v{vDW}, s[{sW}:{sW+3}], s{sSOW} offen offset:{1024*u} lds")
    return g


def reads(s, f):
    b = F[f]
    return [
        f"ds_read_b128 {vr(b,4)}, v{vXA+s}",
        f"ds_read_b64_tr_b16 {vr(b+8,2)}, v{vWA+2*s}",
        f"ds_read_b64_tr_b16 {vr(b+10,2)}, v{vWA+2*s} offset:1024",
        f"ds_read_b128 {vr(b+4,4)}, v{vXA+s} offset:4096",
        f"ds_read_b64_tr_b16 {vr(b+12,2)}, v{vWA+2*s+1}",
        f"ds_read_b64_tr_b16 {vr(b+14,2)}, v{vWA+2*s+1} offset:1024",
    ]


def mfmas(f, ct_orient, first):
    b = F[f]
    out = []
    for (i, bb) in ((0, 0), (0, 1), (1, 0), (1, 1)):
        acc = ACC + 16 * (2 * i + bb)
        x = vr(b + 4 * bb, 4)
        w = vr(b + 8 + 4 * i, 4)
        a, bo = (w, x) if ct_orient else (x, w)
        c = "0" if first else vr(acc, 16)
        out.append(f"v_mfma_f32_32x32x16_bf16 {vr(acc,16)}, {a}, {bo}, {c}")
    return out


def rowstat(f):
    b = F[f]
    out = []
    for j in range(4):
        for bb in range(2):
            r = b + 4 * bb + j
            out.append(f"v_dot2_f32_bf16 v{vSX+2*bb}, v{r}, s{sONE}, v{vSX+2*bb}")
            out.append(f"v_dot2_f32_bf16 v{vSX+2*bb+1}, v{r}, v{r}, v{vSX+2*bb+1}")
    return out


def colstat(f):
    b = F[f]
    out = []
    for j in range(4):
        for i in range(2):
            r = b + 8 + 4 * i + j
            out.append(f"v_dot2_f32_bf16 v{vCS+i}, v{r}, s{sONE}, v{vCS+i}")
    return out


def interleave(k, mf, fill):
    n = len(fill)
    per = [n // 4 + (1 if i < n % 4 else 0) for i in range(4)]
    p = 0
    for i in range(4):
        k(mf[i])
        for _ in range(per[i]):
            k(fill[p])
            p += 1


def mainloop(k, ct_orient):
    for st in range(NST):
        last = st == NST - 1
        k.c(f"---- stage {st}")
        for r in reads(1, 1):
            k(r)
        k("s_waitcnt lgkmcnt(6)")
        interleave(k, mfmas(0, ct_orient, st == 0), rowstat(0) + colstat(0))
        for r in reads(2, 0):
            k(r)
        k("s_waitcnt lgkmcnt(6)")
        fill = []
        d = SLOT if (st % 3) != 2 else -2 * SLOT
        if not last:
            for s in (0, 1):
                for v in (vXA + s, vWA + 2 * s, vWA + 2 * s + 1):
                    fill.append(f"v_add_u32 v{v}, {d & 0xffffffff}, v{v}")
        else:
            fill = [f"s_nop 1\nv_permlane32_swap_b32 v{vSX}, v{vSX+2}",
                    f"v_permlane32_swap_b32 v{vSX+1}, v{vSX+3}",
                    f"v_add_f32 v{vSX}, v{vSX}, v{vSX+2}",
                    f"v_add_f32 v{vSX+1}, v{vSX+1}, v{vSX+3}",
                    f"ds_write_b32 v{vT}, v{vSX}",
                    f"ds_write_b32 v{vT}, v{vSX+1} offset:2048"]
        interleave(k, mfmas(1, ct_orient, False), fill)
        for r in reads(3, 1):
            k(r)
        k("s_waitcnt lgkmcnt(6)")
        fill = colstat(0)
        if not last:
            fill += [f"v_add_u32 v{v}, {d & 0xffffffff}, v{v}" for v in (vXA + 2, vWA + 4, vWA + 5)]
        else:
            fill += [f"v_nop\nv_nop\nv_nop\nv_permlane32_swap_b32 v{vCS}, v{vCS+1}",
                     f"v_add_f32 v{vCS}, v{vCS}, v{vCS+1}",
                     f"ds_write_b32 v{vT+1}, v{vCS}"]
        interleave(k, mfmas(0, ct_orient, False), fill)
        if st <= NST - 3:
            k("s_waitcnt vmcnt(6) lgkmcnt(0)")
        else:
            k("s_waitcnt vmcnt(0) lgkmcnt(0)")
        k("s_barrier")
        fill = []
        if not last:
            fill.append("\n".join(reads(0, 0)))
            fill.append("\n".join(f"v_add_u32 v{v}, {d & 0xffffffff}, v{v}" for v in (vXA + 3, vWA + 6, vWA + 7)))
            if st + 3 < NST:
                g = dma_stage(k, st + 3)
                fill[1] += "\n" + "\n".join(g[:2])
                fill.append("\n".join(g[2:4]))
                fill.append("\n".join(g[4:6]))
        interleave(k, mfmas(1, ct_orient, False), fill)


def finalize_rowstats(k):
    k(f"""ds_read_b128 v[32:35], v{vT+2}
    ds_read_b128 v[36:39], v{vT+2} offset:2048
    s_waitcnt lgkmcnt(0)
    v_add_f32 v32, v32, v33
    v_add_f32 v34, v34, v35
    v_add_f32 v36, v36, v37
    v_add_f32 v38, v38, v39
    v_add_f32 v32, v32, v34
    v_add_f32 v36, v36, v38
    v_mul_f32 v{vSX}, {f32(1/640)}, v32
    v_mul_f32 v36, {f32(1/640)}, v36
    v_fma_f32 v36, -v{vSX}, v{vSX}, v36
    v_max_f32 v36, 0, v36
    v_add_f32 v36, {f32(1e-5)}, v36
    v_rsq_f32 v{vSX+1}, v36""")


def epi_ct(k):
    finalize_rowstats(k)
    k(f"""v_lshrrev_b32 v{vT+3}, 5, v{vL}
    v_lshlrev_b32 v{vT+3}, 4, v{vT+3}
    s_lshl_b32 s{sT0}, s{sPART}, 10
    s_lshl_b32 s{sT1}, s{sCH}, 8
    s_add_u32 s{sT0}, s{sT0}, s{sT1}
    s_add_u32 s{sT0}, s{sT0}, {ST_COL}
    v_add_u32 v{vT+3}, s{sT0}, v{vT+3}""")
    for j in range(8):
        k(f"ds_read_b128 {vr(32+4*j,4)}, v{vT+3} offset:{32*j}")
    for j in range(8):
        k(f"ds_read_b128 {vr(128+4*j,4)}, v{vT+3} offset:{512+32*j}")
    k(f"""v_mov_b32 v{vSX+2}, v{vSX}
    v_mov_b32 v{vSX+3}, v{vSX+1}
    s_nop 1
    v_permlane32_swap_b32 v{vSX}, v{vSX+2}
    v_permlane32_swap_b32 v{vSX+1}, v{vSX+3}""")
    k("s_waitcnt lgkmcnt(0)")
    for j in range(32):
        k(f"v_add_f32 v{32+j}, v{32+j}, v{128+j}")
    lf = k.newlabel("epiF")
    ld = k.newlabel("done")
    k(f"s_cmp_eq_u32 s{sPART}, 1\ns_cbranch_scc1 {lf}")
    k.c("Q/K epilogue")
    k(f"""s_cmp_lt_u32 s{sCT}, 5
    s_cselect_b32 s{sT0}, {f32(LOG2E/20**0.5)}, 1.0
    s_cselect_b32 s{sT1}, {QP}, {KP - 5*32*256}
    v_mul_f32 v{vSX+1}, s{sT0}, v{vSX+1}
    v_mul_f32 v{vSX+3}, s{sT0}, v{vSX+3}
    s_lshl_b32 s{sT2}, s{sRB}, 2
    s_lshl_b32 s{sT3}, s{sRH}, 1
    s_add_u32 s{sT2}, s{sT2}, s{sT3}
    s_mul_i32 s{sT2}, s{sT2}, 40960
    s_add_u32 s{sT1}, s{sT1}, s{sT2}
    s_lshl_b32 s{sT2}, s{sCT}, 13
    s_add_u32 s{sT1}, s{sT1}, s{sT2}
    s_lshl_b32 s{sT2}, s{sCH}, 12
    s_add_u32 s{sT1}, s{sT1}, s{sT2}
    s_add_u32 s{sT2}, s{sT1}, 40960
    v_lshlrev_b32 v{vT+3}, 3, v{vL}""")
    tmp = 128
    n = 0
    for i in range(2):
        for b in range(2):
            acc = ACC + 16 * (2 * i + b)
            for g in range(4):
                for e in range(4):
                    r = acc + 4 * g + e
                    k(f"v_fma_f32 v{r}, -v{vSX+2*b}, v{32+16*i+4*g+e}, v{r}")
                for e in range(4):
                    r = acc + 4 * g + e
                    k(f"v_mul_f32 v{r}, v{vSX+2*b+1}, v{r}")
                t = tmp + 2 * (n % 8)
                n += 1
                k(f"v_cvt_pk_bf16_f32 v{t}, v{acc+4*g}, v{acc+4*g+1}")
                k(f"v_cvt_pk_bf16_f32 v{t+1}, v{acc+4*g+2}, v{acc+4*g+3}")
                k(f"buffer_store_dwordx2 {vr(t,2)}, v{vT+3}, s[{sWS}:{sWS+3}], s{sT1+b} offen offset:{(8*i+2*g)*256}")
    k(f"s_endpgm")
    k(f"{lf}:")
    k.c("F epilogue: silu")
    k(f"""s_lshl_b32 s{sT0}, s{sCT}, 1
    s_add_u32 s{sT0}, s{sT0}, s{sCH}
    s_cmp_ge_u32 s{sT0}, 27
    s_cbranch_scc1 {ld}
    s_lshl_b32 s{sT0}, s{sT0}, 12
    s_lshl_b32 s{sT2}, s{sRB}, 2
    s_lshl_b32 s{sT3}, s{sRH}, 1
    s_add_u32 s{sT2}, s{sT2}, s{sT3}
    s_mul_i32 s{sT2}, s{sT2}, {108*1024}
    s_add_u32 s{sT1}, s{sT0}, s{sT2}
    s_add_u32 s{sT1}, s{sT1}, {HP}
    s_add_u32 s{sT2}, s{sT1}, {108*1024}
    s_mov_b32 s{sT3}, {f32(-LOG2E)}
    v_mul_f32 v{vSX+1}, s{sT3}, v{vSX+1}
    v_mul_f32 v{vSX+3}, s{sT3}, v{vSX+3}
    v_mov_b32 v{vT+4}, s{sT3}
    v_lshlrev_b32 v{vT+3}, 4, v{vL}""")
    n = 0
    for i in range(2):
        for b in range(2):
            acc = ACC + 16 * (2 * i + b)
            for j in range(2):
                rs = [acc + 8 * j + e for e in range(8)]
                e0 = 144 + 8 * (n % 2)
                for e, r in enumerate(rs):
                    k(f"v_fma_f32 v{r}, -v{vSX+2*b}, v{32+16*i+8*j+e}, v{r}")
                for e, r in enumerate(rs):
                    k(f"v_mul_f32 v{r}, v{vSX+2*b+1}, v{r}")
                for e, r in enumerate(rs):
                    k(f"v_exp_f32 v{e0+e}, v{r}")
                for e, r in enumerate(rs):
                    k(f"v_fma_f32 v{e0+e}, v{e0+e}, v{vT+4}, v{vT+4}")
                for e, r in enumerate(rs):
                    k(f"v_rcp_f32 v{e0+e}, v{e0+e}")
                for e, r in enumerate(rs):
                    k(f"v_mul_f32 v{r}, v{r}, v{e0+e}")
                t = tmp + 4 * (n % 4)
                n += 1
                for e in range(4):
                    k(f"v_cvt_pk_bf16_f32 v{t+e}, v{rs[2*e]}, v{rs[2*e+1]}")
                k(f"buffer_store_dwordx4 {vr(t,4)}, v{vT+3}, s[{sWS}:{sWS+3}], s{sT1+b} offen offset:{(2*i+j)*1024}")
    k(f"{ld}:")
    k("s_endpgm")


def epi_v(k):
    finalize_rowstats(k)
    k(f"""s_lshl_b32 s{sT0}, s{sWV}, 9
    s_add_u32 s{sT0}, s{sT0}, {ST_FIN}
    v_lshlrev_b32 v{vT+3}, 2, v{vL}
    v_add_u32 v{vT+3}, s{sT0}, v{vT+3}
    ds_write_b32 v{vT+3}, v{vSX}
    ds_write_b32 v{vT+3}, v{vSX+1} offset:256
    v_lshrrev_b32 v{vT+4}, 5, v{vL}
    v_lshlrev_b32 v{vT+4}, 4, v{vT+4}
    v_add_u32 v{vT+4}, s{sT0}, v{vT+4}
    v_and_b32 v{vT+5}, 31, v{vL}
    v_lshlrev_b32 v{vT+5}, 2, v{vT+5}
    s_lshl_b32 s{sT1}, s{sCH}, 8
    s_add_u32 s{sT1}, s{sT1}, {ST_COL}
    v_add_u32 v{vT+5}, s{sT1}, v{vT+5}
    ds_read_b32 v{vCS}, v{vT+5}
    ds_read_b32 v{vCS+1}, v{vT+5} offset:128
    ds_read_b32 v{vT+6}, v{vT+5} offset:512
    ds_read_b32 v{vT+7}, v{vT+5} offset:640
    s_waitcnt lgkmcnt(0)""")
    for j in range(8):
        k(f"ds_read_b128 {vr(32+4*j,4)}, v{vT+4} offset:{32*j}")
    for j in range(8):
        k(f"ds_read_b128 {vr(128+4*j,4)}, v{vT+4} offset:{256+32*j}")
    k(f"""v_add_f32 v{vCS}, v{vCS}, v{vT+6}
    v_add_f32 v{vCS+1}, v{vCS+1}, v{vT+7}
    s_lshl_b32 s{sT2}, s{sRB}, 2
    s_lshl_b32 s{sT3}, s{sRH}, 1
    s_add_u32 s{sT2}, s{sT2}, s{sT3}
    s_mul_i32 s{sT2}, s{sT2}, 40960
    s_sub_u32 s{sT0}, s{sCT}, 10
    s_lshl_b32 s{sT0}, s{sT0}, 11
    s_add_u32 s{sT2}, s{sT2}, s{sT0}
    s_lshl_b32 s{sT0}, s{sCH}, 10
    s_add_u32 s{sT2}, s{sT2}, s{sT0}
    s_add_u32 s{sT0}, s{sT2}, {VP}
    s_add_u32 s{sT1}, s{sT0}, 20480
    s_add_u32 s{sT2}, s{sT0}, 40960
    s_add_u32 s{sT3}, s{sT0}, {40960+20480}
    v_lshrrev_b32 v{vT+3}, 5, v{vL}
    v_mul_u32_u24 v{vT+3}, 10240, v{vT+3}
    v_and_b32 v{vT+4}, 31, v{vL}
    v_lshlrev_b32 v{vT+4}, 4, v{vT+4}
    v_add_u32 v{vT+3}, v{vT+3}, v{vT+4}
    s_waitcnt lgkmcnt(0)""")
    n = 0
    for i in range(2):
        for b in range(2):
            acc = ACC + 16 * (2 * i + b)
            for j in range(2):
                rs = [acc + 8 * j + e for e in range(8)]
                for e, r in enumerate(rs):
                    k(f"v_fma_f32 v{r}, -v{32+16*b+8*j+e}, v{vCS+i}, v{r}")
                for e, r in enumerate(rs):
                    k(f"v_mul_f32 v{r}, v{128+16*b+8*j+e}, v{r}")
                t = 160 + 4 * (n % 4)
                n += 1
                for e in range(4):
                    k(f"v_cvt_pk_bf16_f32 v{t+e}, v{rs[2*e]}, v{rs[2*e+1]}")
                k(f"buffer_store_dwordx4 {vr(t,4)}, v{vT+3}, s[{sWS}:{sWS+3}], s{sT0+2*b+j} offen offset:{512*i}")
    k("s_endpgm")


def transposer(k):
    sW2, sWO, sSRC = 8, 12, 40
    sU, sSO, sDST, sTM, sLB = 21, 22, 23, 24, 25
    k(f"""s_load_dwordx2 s[4:5], s[0:1], 40
    s_load_dwordx2 s[6:7], s[0:1], 16
    s_load_dwordx2 s[38:39], s[0:1], 64
    v_and_b32 v{vL}, 63, v0
    v_lshrrev_b32 v2, 6, v0
    s_nop 0
    v_readfirstlane_b32 s{sWV}, v2
    s_waitcnt lgkmcnt(0)""")
    srd(k, sWS, 38, WS_BYTES)
    k(f"""s_mov_b32 s{sSRC+3}, 0x00020000
    s_lshl_b32 s3, s3, 3
    s_add_u32 s3, s3, s{sWV}
    s_mul_i32 s{sLB}, s{sWV}, 15360""")
    for j in range(5):
        k(f"""v_add_u32 v2, {64*j}, v{vL}
        v_mul_u32_u24 v3, 3277, v2
        v_lshrrev_b32 v3, 16, v3
        v_mul_u32_u24 v4, 20, v3
        v_sub_u32 v4, v2, v4
        v_lshlrev_b32 v4, 4, v4
        v_mul_u32_u24 v5, 1280, v3
        v_add_u32 v{10+j}, v4, v5
        v_lshrrev_b32 v{15+j}, 2, v3""")
    k(f"""v_lshrrev_b32 v2, 5, v{vL}
    v_lshlrev_b32 v2, 2, v2
    v_bfe_u32 v3, v{vL}, 2, 2
    v_add_u32 v2, v2, v3
    v_mul_u32_u24 v2, 320, v2
    v_bfe_u32 v3, v{vL}, 4, 1
    v_lshlrev_b32 v3, 5, v3
    v_add_u32 v2, v2, v3
    v_and_b32 v3, 3, v{vL}
    v_lshlrev_b32 v3, 3, v3
    v_add_u32 v2, v2, v3
    v_add_u32 v6, s{sLB}, v2
    v_lshlrev_b32 v7, 4, v{vL}""")

    def unit(r, dst_only):
        k(f"s_add_u32 s{sU}, s3, {128*r}")
        if r == 4:
            k(f"s_cmp_ge_u32 s{sU}, 592\ns_cselect_b32 s26, 128, 0\ns_sub_u32 s{sU}, s{sU}, s26")
        k(f"""s_lshr_b32 s26, s{sU}, 2
        s_and_b32 s27, s{sU}, 3""")
        if dst_only:
            k(f"""s_mul_i32 s{sDST}, s26, 20480
            s_mul_i32 s27, s27, 5120
            s_add_u32 s{sDST}, s{sDST}, s27
            s_add_u32 s{sDST}, s{sDST}, {W2T}""")
            return
        k(f"""s_lshl_b32 s28, s26, 4
        s_sub_u32 s29, s26, 108
        s_mul_i32 s29, s29, 20
        s_cmp_ge_u32 s26, 108
        s_cselect_b32 s28, s29, s28
        s_cselect_b32 s{sSRC}, s6, s4
        s_cselect_b32 s{sSRC+1}, s7, s5
        s_mov_b32 s29, {W2_BYTES}
        s_cselect_b32 s{sSRC+2}, {WO_BYTES}, s29
        s_sub_u32 s29, s26, 140
        s_mul_i32 s29, s29, 80
        s_add_u32 s29, s29, 16
        s_cmp_ge_u32 s26, 140
        s_cselect_b32 s28, s29, s28
        s_cselect_b32 s{sTM}, 20480, 0
        s_mul_i32 s{sSO}, s28, 1280
        s_mul_i32 s27, s27, 320
        s_add_u32 s{sSO}, s{sSO}, s27""")
        for j in range(5):
            k(f"""s_add_u32 m0, s{sLB}, {(r % 3)*5120 + j*1024}
            v_mad_u32_u24 v8, v{15+j}, s{sTM}, v{10+j}
            buffer_load_dwordx4 v8, s[{sSRC}:{sSRC+3}], s{sSO} offen lds""")

    assert WOT == W2T + 108 * 20480
    for r in range(3):
        unit(r, False)
    waits = [10, 15, 15, 10, 5]
    waits = [10, 15, 20, 20, 15]
    for r in range(5):
        k(f"s_waitcnt vmcnt({waits[r]})")
        base = 32 + 20 * (r % 2)
        for nb in range(5):
            for t in range(2):
                k(f"ds_read_b64_tr_b16 {vr(base+4*nb+2*t,2)}, v6 offset:{(r%3)*5120 + t*8*320 + nb*64}")
        k("s_waitcnt lgkmcnt(0)")
        if r + 3 < 5:
            unit(r + 3, False)
        unit(r, True)
        for nb in range(5):
            if nb == 4:
                k(f"s_add_u32 s{sDST}, s{sDST}, 4096")
            k(f"buffer_store_dwordx4 {vr(base+4*nb,4)}, v7, s[{sWS}:{sWS+3}], s{sDST} offen offset:{1024*nb if nb < 4 else 0}")
    k("s_endpgm")


def gen_k1(name):
    k = Kernel(name)
    lt = k.newlabel("transposer")
    lx = k.newlabel("exit")
    lv = k.newlabel("vpart")
    k(f"""s_cmp_ge_u32 s2, 256
    s_cbranch_scc1 {lx}
    s_and_b32 s3, s2, 7
    s_lshr_b32 s4, s2, 3
    s_cmp_ge_u32 s4, 30
    s_cbranch_scc0 {lt}_no
    s_lshl_b32 s3, s3, 1
    s_add_u32 s3, s3, s4
    s_sub_u32 s3, s3, 30
    s_branch {lt}
    {lx}:
    s_endpgm
    {lt}_no:
    s_mul_i32 s3, s3, 30
    s_add_u32 s3, s3, s4
    s_cmp_ge_u32 s3, 120
    s_cselect_b32 s4, 120, 0
    s_cselect_b32 s5, 8, 0
    s_sub_u32 s3, s3, s4
    s_lshr_b32 s{sCT}, s3, 3
    s_and_b32 s3, s3, 7
    s_add_u32 s{sRB}, s3, s5
    s_load_dwordx2 s[4:5], s[0:1], 0
    s_load_dwordx2 s[6:7], s[0:1], 8
    s_load_dwordx2 s[40:41], s[0:1], 32
    s_load_dwordx2 s[38:39], s[0:1], 64
    v_and_b32 v{vL}, 63, v0
    v_lshrrev_b32 v2, 6, v0
    s_nop 0
    v_readfirstlane_b32 s{sWV}, v2
    s_mov_b32 s{sONE}, 0x3f803f80
    s_and_b32 s{sRH}, s{sWV}, 1
    s_bfe_u32 s{sCH}, s{sWV}, 0x10001
    s_lshr_b32 s{sPART}, s{sWV}, 2
    s_lshr_b32 s{sXI}, s{sWV}, 1
    s_xor_b32 s{sXI}, s{sXI}, s{sRH}
    s_waitcnt lgkmcnt(0)""")
    srd(k, sX, 4, X_BYTES)
    srd(k, sWS, 38, WS_BYTES)
    k(f"""s_cmp_eq_u32 s{sPART}, 0
    s_cselect_b32 s{sW}, s6, s40
    s_cselect_b32 s{sW+1}, s7, s41
    s_mov_b32 s{sT0}, {W1_BYTES}
    s_cselect_b32 s{sW+2}, {WQKV_BYTES}, s{sT0}
    s_mov_b32 s{sW+3}, 0x00020000
    s_mov_b32 s{sT0}, 3456
    s_cselect_b32 s{sLDW}, 3840, s{sT0}
    s_lshl_b32 s{sDU}, s{sLDW}, 2
    s_sub_u32 s{sDU}, s{sDU}, 1024
    s_lshl_b32 s{sM0X}, s{sWV}, 11
    s_and_b32 s{sT0}, s{sWV}, 3
    s_lshl_b32 s{sM0W}, s{sT0}, 12
    s_lshl_b32 s{sT1}, s{sPART}, 14
    s_add_u32 s{sM0W}, s{sM0W}, s{sT1}
    s_add_u32 s{sM0W}, s{sM0W}, 16384""")
    k(f"""; X: row = rb*128 + 16w + 8u + (l>>3), chunk = (l&7) ^ (4u + (l>>4))
    s_lshl_b32 s{sT1}, s{sRB}, 7
    s_lshl_b32 s{sT2}, s{sWV}, 4
    s_add_u32 s{sT1}, s{sT1}, s{sT2}
    v_lshrrev_b32 v2, 3, v{vL}
    v_add_u32 v2, s{sT1}, v2
    v_mul_u32_u24 v2, 1280, v2
    v_and_b32 v3, 7, v{vL}
    v_lshrrev_b32 v4, 4, v{vL}
    v_xor_b32 v3, v3, v4
    v_lshlrev_b32 v5, 4, v3
    v_add_u32 v{vDX}, v2, v5
    v_xor_b32 v5, 64, v5
    v_add_u32 v{vDX+1}, v2, v5
    v_add_u32 v{vDX+1}, {8*1280-1024}, v{vDX+1}
    s_lshl_b32 s{sT0}, s{sT0}, 4
    v_add_u32 v2, s{sT0}, v4
    v_mul_lo_u32 v2, v2, s{sLDW}
    v_and_b32 v3, 15, v{vL}
    v_lshlrev_b32 v5, 2, v4
    v_xor_b32 v3, v3, v5
    v_lshlrev_b32 v3, 4, v3
    s_lshl_b32 s{sT1}, s{sCT}, 8
    v_add3_u32 v{vDW}, v2, v3, s{sT1}""")
    for st in range(3):
        for g in dma_stage(k, st):
            k(g)
    k(f"""v_and_b32 v{vT}, 31, v{vL}
    v_lshrrev_b32 v{vT+1}, 5, v{vL}
    v_bfe_u32 v{vT+2}, v{vL}, 1, 3
    v_xor_b32 v{vT+2}, v{vT+2}, v{vT+1}
    s_lshl_b32 s{sT0}, s{sRH}, 13
    v_lshlrev_b32 v{vT+3}, 7, v{vT}
    v_add_u32 v{vT+3}, s{sT0}, v{vT+3}""")
    for s in range(4):
        k(f"""s_xor_b32 s{sT0}, s{sXI}, {s}
        s_lshl_b32 s{sT0}, s{sT0}, 1
        v_xor_b32 v{vT+4}, s{sT0}, v{vT+2}
        v_lshl_add_u32 v{vXA+s}, v{vT+4}, 4, v{vT+3}""")
    k(f"""v_bfe_u32 v{vT+2}, v{vL}, 2, 2
    v_lshl_add_u32 v{vT+3}, v{vT+1}, 3, v{vT+2}
    v_lshlrev_b32 v{vT+3}, 8, v{vT+3}
    v_bfe_u32 v{vT+4}, v{vL}, 4, 1
    v_lshl_add_u32 v{vT+3}, v{vT+4}, 5, v{vT+3}
    v_and_b32 v{vT+4}, 3, v{vL}
    v_lshl_add_u32 v{vT+3}, v{vT+4}, 3, v{vT+3}
    s_lshl_b32 s{sT1}, s{sPART}, 14
    s_add_u32 s{sT1}, s{sT1}, 16384
    s_lshl_b32 s{sT2}, s{sCH}, 1""")
    for b in range(2):
        k(f"""s_add_u32 s{sT3}, s{sT2}, {b}
        v_xor_b32 v{vT+4}, s{sT3}, v{vT+2}
        v_lshl_add_u32 v{vT+5+b}, v{vT+4}, 6, v{vT+3}""")
    for s in range(4):
        k(f"""s_xor_b32 s{sT0}, s{sXI}, {s}
        s_lshl_b32 s{sT0}, s{sT0}, 12
        s_add_u32 s{sT0}, s{sT0}, s{sT1}
        v_add_u32 v{vWA+2*s}, s{sT0}, v{vT+5}
        v_add_u32 v{vWA+2*s+1}, s{sT0}, v{vT+6}""")
    for r in range(vSX, vSX + 6):
        k(f"v_mov_b32 v{r}, 0")
    k(f"""s_lshl_b32 s{sT0}, s{sRH}, 10
    s_add_u32 s{sT0}, s{sT0}, {ST_ROW}
    v_lshlrev_b32 v{vT+2}, 4, v{vL}
    v_add_u32 v{vT+2}, s{sT0}, v{vT+2}
    s_lshr_b32 s{sT0}, s{sWV}, 1
    s_lshl_b32 s{sT0}, s{sT0}, 2
    v_add_u32 v{vT}, s{sT0}, v{vT+2}
    s_lshl_b32 s{sT0}, s{sPART}, 10
    s_lshl_b32 s{sT1}, s{sRH}, 9
    s_add_u32 s{sT0}, s{sT0}, s{sT1}
    s_lshl_b32 s{sT1}, s{sCH}, 8
    s_add_u32 s{sT0}, s{sT0}, s{sT1}
    s_add_u32 s{sT0}, s{sT0}, {ST_COL}
    v_lshlrev_b32 v{vT+1}, 2, v{vL}
    v_add_u32 v{vT+1}, s{sT0}, v{vT+1}
    s_waitcnt vmcnt(12)
    s_barrier""")
    for r in reads(0, 0):
        k(r)
    k(f"""s_cmp_ge_u32 s{sCT}, 10
    s_cselect_b32 s{sT0}, 1, 0
    s_cmp_eq_u32 s{sPART}, 0
    s_cselect_b32 s{sT0}, s{sT0}, 0
    s_cmp_eq_u32 s{sT0}, 1
    s_cbranch_scc1 {lv}""")
    mainloop(k, True)
    epi_ct(k)
    k(f"{lv}:")
    mainloop(k, False)
    epi_v(k)
    k(f"{lt}:")
    transposer(k)
    return k, 176, K1_LDS
```

```python
from common import *

TS = 2624
CH = 8 * TS
NSLOT = 3
K2_LDS = NSLOT * CH

sWS = 8
sWV, sH, sQT, sC, sSO, sM0, sNX = 12, 13, 14, 15, 16, 17, 18
sE1, sE2, sLO, sHI = 20, 22, 24, 26
sT0, sT1, sT2 = 28, 29, 30
sVM = 32
vL = 1
vQM, vQT, vKM, vKT = 4, 8, 10, 14
vV = [16, 20]
vP = [24, 28]
vS = [32, 48]
vO = 64
vCUR = 80
vNXT = 83
vD = 86
vT = 90
NV = 96


def dma(k, skip_label=None):
    k(f"""s_mov_b32 m0, s{sM0}
    s_nop 0
    buffer_load_dwordx4 v{vD}, s[{sWS}:{sWS+3}], s{sSO} offen lds
    s_mov_b64 exec, s[{sE1}:{sE1+1}]
    buffer_load_dwordx4 v{vD+1}, s[{sWS}:{sWS+3}], s{sSO} offen offset:1024 lds
    s_mov_b64 exec, s[{sE2}:{sE2+1}]
    buffer_load_dwordx4 v{vD+2}, s[{sWS}:{sWS+3}], s{sSO} offen offset:2048 lds
    s_mov_b64 exec, -1
    s_add_u32 s{sSO}, s{sSO}, {8*40960}
    s_add_u32 s{sM0}, s{sM0}, {CH}
    s_cmp_ge_u32 s{sM0}, {NSLOT*CH}
    s_cselect_b32 s{sT0}, {NSLOT*CH}, 0
    s_sub_u32 s{sM0}, s{sM0}, s{sT0}""")


def rd_kt(t):
    a, o = (vCUR, t * TS) if t < 8 else (vNXT, (t - 8) * TS)
    return f"ds_read_b64 {vr(vKT,2)}, v{a+1} offset:{o}"


def rd_km(t):
    a, o = (vCUR, t * TS) if t < 8 else (vNXT, (t - 8) * TS)
    return f"ds_read_b64 {vr(vKM,2)}, v{a} offset:{o}\nds_read_b64 {vr(vKM+2,2)}, v{a} offset:{o+256}"


def rd_v(j, t):
    a, o = (vCUR, t * TS) if t < 8 else (vNXT, (t - 8) * TS)
    return f"ds_read_b128 {vr(vV[j],4)}, v{a+2} offset:{o+672*j}"


def m_tail(s):
    return f"v_mfma_f32_32x32x8_bf16 {vr(s,16)}, {vr(vKT,2)}, {vr(vQT,2)}, 0"


def m_main(s):
    return f"v_mfma_f32_32x32x16_bf16 {vr(s,16)}, {vr(vKM,4)}, {vr(vQM,4)}, {vr(s,16)}"


def m_pv(j):
    return f"v_mfma_f32_32x32x16_bf16 {vr(vO,16)}, {vr(vV[j],4)}, {vr(vP[j],4)}, {vr(vO,16)}"


def tile(k, tt, lskip):
    s = vS[tt % 2]
    sn = vS[(tt + 1) % 2]
    E = lambda r: f"v_exp_f32 v{s+r}, v{s+r}"
    C = lambda i: f"v_cvt_pk_bf16_f32 v{vP[i//4]+i%4}, v{s+2*i}, v{s+2*i+1}"
    mids = [
        "s_waitcnt lgkmcnt(1)\n" + m_pv(1) + "\n" + rd_v(1, tt),
        m_tail(sn) + "\n" + rd_kt(tt + 2),
        m_main(sn) + "\n" + rd_km(tt + 2),
        "s_waitcnt lgkmcnt(4)\n" + m_pv(0) + "\n" + rd_v(0, tt + 1),
    ]
    for g in range(4):
        if tt == 6 and g == 1:
            k(f"""s_waitcnt vmcnt(0)
            s_barrier
            s_cmp_ge_u32 s{sC}, 6
            s_cbranch_scc1 {lskip}""")
            dma(k)
            k(f"{lskip}:")
        k(E(4 * g))
        k(E(4 * g + 1))
        k(mids[g])
        k(E(4 * g + 2))
        k(E(4 * g + 3))
        k(C(2 * g))
        k(C(2 * g + 1))


def gen_attn(name):
    k = Kernel(name)
    lx = k.newlabel("exit")
    lloop = k.newlabel("loop")
    lskip = k.newlabel("skipdma")
    lfin = k.newlabel("fin")
    lslow = k.newlabel("slow")
    k(f"""s_cmp_ge_u32 s2, 256
    s_cbranch_scc1 {lx}
    s_load_dwordx2 s[4:5], s[0:1], 64
    v_and_b32 v{vL}, 63, v0
    v_lshrrev_b32 v2, 6, v0
    s_nop 0
    v_readfirstlane_b32 s{sWV}, v2
    s_and_b32 s3, s2, 7
    s_lshr_b32 s6, s2, 3
    s_lshr_b32 s7, s6, 3
    s_lshl_b32 s3, s3, 2
    s_add_u32 s{sH}, s3, s7
    s_and_b32 s6, s6, 7
    s_lshl_b32 s6, s6, 3
    s_add_u32 s{sQT}, s6, s{sWV}
    s_mov_b32 s{sE1}, -1
    s_mov_b32 s{sE1+1}, {(~((1 << (36-32)) | (1 << (57-32)))) & 0xffffffff:#x}
    s_mov_b32 s{sE2}, {(~(1 << 14)) & 0xffffffff:#x}
    s_mov_b32 s{sE2+1}, 7
    s_mov_b32 s{sLO}, -1
    s_mov_b32 s{sLO+1}, 0
    s_mov_b32 s{sHI}, 0
    s_mov_b32 s{sHI+1}, -1
    s_mov_b32 s{sVM}, 0xfffff
    s_mov_b32 s{sVM+1}, 0xfffff
    s_waitcnt lgkmcnt(0)""")
    srd(k, sWS, 4, WS_BYTES)
    k(f"""s_mul_i32 s{sT0}, s{sWV}, 40960
    s_mul_i32 s{sT1}, s{sH}, 1280
    s_add_u32 s{sT1}, s{sT1}, s{sT0}
    s_add_u32 s{sT1}, s{sT1}, {KP}
    s_mul_i32 s{sT2}, s{sH}, 320
    s_add_u32 s{sT2}, s{sT2}, s{sT0}
    s_add_u32 s{sT2}, s{sT2}, {VP}
    v_lshlrev_b32 v2, 4, v{vL}
    v_add_u32 v{vD}, s{sT1}, v2""")
    for i in (1, 2):
        k(f"""v_add_u32 v3, {(64*i-80) & 0xffffffff}, v{vL}
        v_max_i32 v3, 0, v3
        v_mul_u32_u24 v4, 3121, v3
        v_lshrrev_b32 v4, 16, v4
        v_mul_u32_u24 v5, 21, v4
        v_sub_u32 v5, v3, v5
        v_mul_u32_u24 v4, 10240, v4
        v_lshl_add_u32 v4, v5, 4, v4
        v_add_u32 v4, s{sT2}, v4
        v_add_u32 v{vD+i}, {(-1024*i) & 0xffffffff}, v4""")
    k(f"""s_mov_b64 exec, 0xffff
    v_mov_b32 v{vD+1}, v{vD}
    s_mov_b64 exec, -1
    s_mov_b32 s{sSO}, 0
    s_mul_i32 s{sM0}, s{sWV}, {TS}""")
    k(f"""s_mul_i32 s{sT0}, s{sQT}, 40960
    s_mul_i32 s{sT1}, s{sH}, 1280
    s_add_u32 s{sT0}, s{sT0}, s{sT1}
    s_add_u32 s{sT0}, s{sT0}, {QP}
    v_and_b32 v2, 31, v{vL}
    v_lshlrev_b32 v2, 3, v2
    v_lshrrev_b32 v3, 5, v{vL}
    v_lshl_add_u32 v{vCUR}, v3, 9, v2
    v_add_u32 v{vCUR+1}, 1024, v2
    buffer_load_dwordx2 {vr(vQM,2)}, v{vCUR}, s[{sWS}:{sWS+3}], s{sT0} offen
    buffer_load_dwordx2 {vr(vQM+2,2)}, v{vCUR}, s[{sWS}:{sWS+3}], s{sT0} offen offset:256
    buffer_load_dwordx2 {vr(vQT,2)}, v{vCUR+1}, s[{sWS}:{sWS+3}], s{sT0} offen""")
    dma(k)
    dma(k)
    k(f"""v_and_b32 v2, 31, v{vL}
    v_min_u32 v2, 20, v2
    v_lshlrev_b32 v2, 4, v2
    v_mul_u32_u24 v{vT+2}, 336, v3
    v_add3_u32 v{vCUR+2}, v2, v{vT+2}, 64
    v_add_u32 v{vCUR+2}, {1280-64}, v{vCUR+2}
    v_lshrrev_b32 v2, 2, v0
    v_mul_u32_u24 v2, {TS}, v2
    v_and_b32 v{vT+2}, 3, v0
    v_mul_u32_u24 v{vT+2}, 336, v{vT+2}
    v_add_u32 v2, v2, v{vT+2}
    v_mov_b32 v{vT}, 0x3f803f80
    v_mov_b32 v{vT+1}, 0x3f803f80
    v_cmp_gt_u32 vcc, {8*NSLOT*4}, v0
    s_and_saveexec_b64 s[6:7], vcc
    ds_write_b64 v2, {vr(vT,2)} offset:1600
    ds_write_b64 v2, {vr(vT,2)} offset:1608
    s_mov_b64 exec, -1""")
    for i in range(3):
        k(f"v_add_u32 v{vNXT+i}, {CH}, v{vCUR+i}")
    for r in list(range(vO, vO + 16)) + list(range(vP[1], vP[1] + 4)) + list(range(vV[1], vV[1] + 4)):
        k(f"v_mov_b32 v{r}, 0")
    k(f"""s_mov_b32 s{sC}, 0
    s_mov_b32 s{sNX}, {CH}
    s_waitcnt vmcnt(3) lgkmcnt(0)
    s_mov_b64 exec, s[{sHI}:{sHI+1}]
    v_mov_b32 v{vQT}, 0
    v_mov_b32 v{vQT+1}, 0
    s_mov_b64 exec, -1
    s_barrier""")
    k(rd_kt(0))
    k(rd_km(0))
    k("s_waitcnt lgkmcnt(0)")
    k(m_tail(vS[0]))
    k(m_main(vS[0]))
    k(rd_kt(1))
    k(rd_km(1))
    k(rd_v(0, 0))
    k("s_nop 7")
    k(".p2align 3")
    k(f"{lloop}:")
    for tt in range(8):
        tile(k, tt, lskip)
    k(f"""s_add_u32 s{sNX}, s{sNX}, {CH}
    s_cmp_ge_u32 s{sNX}, {NSLOT*CH}
    s_cselect_b32 s{sT0}, {NSLOT*CH}, 0
    s_sub_u32 s{sT1}, {CH}, s{sT0}
    s_sub_u32 s{sNX}, s{sNX}, s{sT0}""")
    for i in range(3):
        k(f"v_mov_b32 v{vCUR+i}, v{vNXT+i}")
    for i in range(3):
        k(f"v_add_u32 v{vNXT+i}, s{sT1}, v{vNXT+i}")
    k(f"""s_add_u32 s{sC}, s{sC}, 1
    s_cmp_lt_u32 s{sC}, 8
    s_cbranch_scc1 {lloop}
    s_waitcnt lgkmcnt(0)""")
    k(m_pv(1))
    k(f"""v_mov_b32 v{vT}, v{vO+8}
    v_mov_b32 v{vT+1}, v{vO+8}
    v_permlane32_swap_b32 v{vT}, v{vT+1}
    v_mov_b32 v{vT+2}, 0""")
    for r in range(12):
        k(f"v_fma_f32 v{vT+2}, v{vO+r}, 0, v{vT+2}")
    k(f"""s_mov_b32 s{sT0}, {f32(2.0**-64)}
    s_mov_b32 s{sT1}, {f32(2.0**64)}
    v_cmp_le_f32 s[6:7], s{sT0}, v{vT+1}
    v_cmp_ge_f32 vcc, s{sT1}, v{vT+1}
    s_and_b64 s[6:7], s[6:7], vcc
    v_cmp_eq_f32 vcc, 0, v{vT+2}
    s_and_b64 s[6:7], s[6:7], vcc
    s_cmp_eq_u64 s[6:7], -1
    s_cbranch_scc0 {lslow}
    {lfin}:
    v_mov_b32 v{vT}, v{vO+8}
    v_mov_b32 v{vT+1}, v{vO+8}
    v_permlane32_swap_b32 v{vT}, v{vT+1}
    v_rcp_f32 v{vT+1}, v{vT+1}
    s_mul_i32 s{sT0}, s{sQT}, 40960
    s_add_u32 s{sT0}, s{sT0}, {OP}
    s_lshl_b32 s{sT1}, s{sH}, 10
    s_add_u32 s{sT1}, s{sT1}, s{sT0}
    s_lshr_b32 s{sT2}, s{sH}, 2
    s_add_u32 s{sT2}, s{sT2}, 32
    s_lshl_b32 s{sT2}, s{sT2}, 10
    s_add_u32 s{sT0}, s{sT0}, s{sT2}
    s_and_b32 s{sT2}, s{sH}, 1
    s_lshl_b32 s{sT2}, s{sT2}, 9
    s_add_u32 s{sT0}, s{sT0}, s{sT2}
    s_bfe_u32 s{sT2}, s{sH}, 0x10001
    s_lshl_b32 s{sT2}, s{sT2}, 3
    s_add_u32 s{sT0}, s{sT0}, s{sT2}""")
    for r in range(12):
        k(f"v_mul_f32 v{vO+r}, v{vO+r}, v{vT+1}")
    for i in range(6):
        k(f"v_cvt_pk_bf16_f32 v{vS[0]+i}, v{vO+2*i}, v{vO+2*i+1}")
    k(f"""v_lshlrev_b32 v2, 4, v{vL}
    buffer_store_dwordx4 {vr(vS[0],4)}, v2, s[{sWS}:{sWS+3}], s{sT1} offen
    s_mov_b64 exec, s[{sLO}:{sLO+1}]
    buffer_store_dwordx2 {vr(vS[0]+4,2)}, v2, s[{sWS}:{sWS+3}], s{sT0} offen
    {lx}:
    s_endpgm""")
    ll = k.newlabel("slowloop")
    s = vS[0]
    vM, vA = vT + 2, vT + 3
    k(f"""{lslow}:
    s_mul_i32 s{sT1}, s{sH}, 1280
    s_add_u32 s{sT1}, s{sT1}, {KP}
    s_mul_i32 s{sT2}, s{sH}, 320
    s_add_u32 s{sT2}, s{sT2}, {VP}
    v_and_b32 v2, 31, v{vL}
    v_lshrrev_b32 v3, 5, v{vL}
    v_lshlrev_b32 v{vCUR+1}, 3, v2
    v_lshl_add_u32 v{vCUR}, v3, 9, v{vCUR+1}
    v_mul_u32_u24 v3, 10240, v3
    v_lshl_add_u32 v{vCUR+2}, v2, 4, v3
    v_add_u32 v{vNXT}, 20480, v{vCUR+2}
    v_mov_b32 v{vM}, 0xff800000
    s_mov_b32 s{sC}, 0""")
    for r in range(16):
        k(f"v_mov_b32 v{vO+r}, 0")
    for r in range(8):
        k(f"v_mov_b32 v{vV[0]+r}, 0x3f803f80")
    k(f"""{ll}:
    buffer_load_dwordx2 {vr(vKM,2)}, v{vCUR}, s[{sWS}:{sWS+3}], s{sT1} offen
    buffer_load_dwordx2 {vr(vKM+2,2)}, v{vCUR}, s[{sWS}:{sWS+3}], s{sT1} offen offset:256
    buffer_load_dwordx2 {vr(vKT,2)}, v{vCUR+1}, s[{sWS}:{sWS+3}], s{sT1} offen offset:1024
    s_mov_b64 exec, s[{sVM}:{sVM+1}]
    buffer_load_dwordx4 {vr(vV[0],4)}, v{vCUR+2}, s[{sWS}:{sWS+3}], s{sT2} offen
    buffer_load_dwordx4 {vr(vV[1],4)}, v{vNXT}, s[{sWS}:{sWS+3}], s{sT2} offen
    s_mov_b64 exec, -1
    s_waitcnt vmcnt(0)""")
    k(m_tail(s))
    k(m_main(s))
    k(f"v_max3_f32 v{vT}, v{s}, v{s+1}, v{vM}")
    for r in range(2, 16, 2):
        k(f"v_max3_f32 v{vT}, v{s+r}, v{s+r+1}, v{vT}")
    k(f"""v_mov_b32 v{vT+1}, v{vT}
    v_permlane32_swap_b32 v{vT}, v{vT+1}
    v_max_f32 v{vT}, v{vT}, v{vT+1}
    v_sub_f32 v{vA}, v{vM}, v{vT}
    v_exp_f32 v{vA}, v{vA}
    v_mov_b32 v{vM}, v{vT}""")
    for r in range(16):
        k(f"v_mul_f32 v{vO+r}, v{vO+r}, v{vA}")
    for r in range(16):
        k(f"v_sub_f32 v{s+r}, v{s+r}, v{vM}")
    for r in range(16):
        k(f"v_exp_f32 v{s+r}, v{s+r}")
    for i in range(8):
        k(f"v_cvt_pk_bf16_f32 v{vP[i//4]+i%4}, v{s+2*i}, v{s+2*i+1}")
    k(m_pv(0))
    k(m_pv(1))
    k(f"""s_add_u32 s{sT1}, s{sT1}, 40960
    s_add_u32 s{sT2}, s{sT2}, 40960
    s_add_u32 s{sC}, s{sC}, 1
    s_cmp_lt_u32 s{sC}, 64
    s_cbranch_scc1 {ll}
    s_branch {lfin}""")
    return k, NV, K2_LDS, None
```

```python
from common import *

QS = 528
WP = 40 * QS
G2_LDS = 4 * WP

sWS, sX = 8, 12
sWV, sTT, sNQ, sA, sB, sI = 16, 17, 18, 19, 20, 21
sT0, sT1, sT2 = 22, 23, 24
vL, vLA = 1, 2
ACC = 16
FR = 96


def loads(k, slot, first=False):
    b = FR + 24 * slot
    k(f"buffer_load_dwordx4 {vr(b,4)}, v{vLA}, s[{sWS}:{sWS+3}], s{sA} offen")
    for n in range(4):
        k(f"buffer_load_dwordx4 {vr(b+4+4*n,4)}, v{vLA}, s[{sWS}:{sWS+3}], s{sB} offen offset:{1024*n}")
    k(f"buffer_load_dwordx4 {vr(b+20,4)}, v{vLA+1}, s[{sWS}:{sWS+3}], s{sB} offen")
    k(f"s_add_u32 s{sA}, s{sA}, 1024\ns_add_u32 s{sB}, s{sB}, 20480")


def mf(k, slot, first):
    b = FR + 24 * slot
    for n in range(5):
        acc = ACC + 16 * n
        c = "0" if first else vr(acc, 16)
        k(f"v_mfma_f32_32x32x16_bf16 {vr(acc,16)}, {vr(b+4+4*n,4)}, {vr(b,4)}, {c}")


def gen_gemm2(name, kind):
    k = Kernel(name)
    lx = k.newlabel("exit")
    ffn = kind == "ffn2"
    nst = 27 if ffn else 10
    depth = 3 if ffn else 6
    k(f"""s_cmp_ge_u32 s2, 256
    s_cbranch_scc1 {lx}
    s_load_dwordx2 s[4:5], s[0:1], 64
    s_load_dwordx2 s[6:7], s[0:1], {0 if ffn else 48}
    v_and_b32 v{vL}, 63, v0
    v_lshrrev_b32 v2, 6, v0
    s_nop 0
    v_readfirstlane_b32 s{sWV}, v2
    s_and_b32 s3, s2, 7
    s_lshr_b32 s{sT0}, s2, 3
    s_and_b32 s{sNQ}, s{sT0}, 3
    s_lshr_b32 s{sT0}, s{sT0}, 2
    s_lshl_b32 s3, s3, 3
    s_add_u32 s{sTT}, s3, s{sT0}
    v_lshlrev_b32 v{vLA}, 4, v{vL}
    v_add_u32 v{vLA+1}, 4096, v{vLA}
    s_mul_i32 s{sT0}, s{sWV}, {nst}
    s_mul_i32 s{sA}, s{sTT}, {108*1024 if ffn else 40960}
    s_lshl_b32 s{sT1}, s{sT0}, 10
    s_add_u32 s{sA}, s{sA}, s{sT1}
    s_add_u32 s{sA}, s{sA}, {HP if ffn else OP}
    s_mul_i32 s{sB}, s{sT0}, 20480
    s_mul_i32 s{sT1}, s{sNQ}, 5120
    s_add_u32 s{sB}, s{sB}, s{sT1}
    s_add_u32 s{sB}, s{sB}, {W2T if ffn else WOT}
    s_waitcnt lgkmcnt(0)""")
    srd(k, sWS, 4, WS_BYTES)
    srd(k, sX, 6, X_BYTES)
    for s in range(depth):
        loads(k, s)
    for m in range(5):
        k(f"""s_lshl_b32 s{sT0}, s{sWV}, 6
        s_add_u32 s{sT0}, s{sT0}, {m*256}
        v_add_u32 v14, s{sT0}, v{vL}
        v_mul_u32_u24 v15, 1639, v14
        v_lshrrev_b32 v15, 16, v15
        v_mul_u32_u24 v{4+m}, 40, v15
        v_sub_u32 v14, v14, v{4+m}
        v_mul_u32_u24 v{4+m}, {QS}, v14
        v_lshl_add_u32 v{4+m}, v15, 4, v{4+m}
        v_mul_u32_u24 v15, 1280, v15
        v_lshl_add_u32 v{9+m}, v14, 3, v15""")
    if ffn:
        ll = k.newlabel("loop")
        for s in range(depth):
            k(f"s_waitcnt vmcnt({6*(depth-1)})")
            mf(k, s, s == 0)
            loads(k, s)
        k(f"s_mov_b32 s{sI}, {nst//depth - 2}")
        k(f"{ll}:")
        for s in range(depth):
            k(f"s_waitcnt vmcnt({6*(depth-1)})")
            mf(k, s, False)
            loads(k, s)
        k(f"s_sub_u32 s{sI}, s{sI}, 1\ns_cmp_lg_u32 s{sI}, 0\ns_cbranch_scc1 {ll}")
        for s in range(depth):
            k(f"s_waitcnt vmcnt({6*(depth-1-s)})")
            mf(k, s, False)
    else:
        issued = depth
        for s in range(nst):
            k(f"s_waitcnt vmcnt({6*(issued-1-s)})")
            mf(k, s % depth, s == 0)
            if issued < nst:
                loads(k, s % depth)
                issued += 1
    k(f"""s_mul_i32 s{sT0}, s{sTT}, {32*1280}
    s_mul_i32 s{sT1}, s{sNQ}, 320
    s_add_u32 s{sT0}, s{sT0}, s{sT1}
    s_lshl_b32 s{sT1}, s{sTT}, 2
    s_add_u32 s{sT1}, s{sT1}, s{sNQ}
    s_mul_i32 s{sT1}, s{sT1}, 20480
    s_lshl_b32 s{sT2}, s{sWV}, 10
    s_add_u32 s{sT1}, s{sT1}, s{sT2}
    s_add_u32 s{sT1}, s{sT1}, {RES}""")
    RB = FR
    for m in range(5):
        if ffn:
            k(f"buffer_load_dwordx2 {vr(RB+4*m,2)}, v{9+m}, s[{sX}:{sX+3}], s{sT0} offen")
        else:
            k(f"buffer_load_dwordx4 {vr(RB+4*m,4)}, v{vLA}, s[{sWS}:{sWS+3}], s{sT1} offen")
            k(f"s_add_u32 s{sT1}, s{sT1}, 4096")
    k(f"""v_lshrrev_b32 v14, 5, v{vL}
    v_mul_u32_u24 v14, {QS}, v14
    v_and_b32 v15, 31, v{vL}
    v_lshl_add_u32 v14, v15, 4, v14
    s_mul_i32 s{sT2}, s{sWV}, {WP}
    v_add_u32 v14, s{sT2}, v14""")
    for n in range(5):
        for g in range(4):
            k(f"ds_write_b128 v14, {vr(ACC+16*n+4*g,4)} offset:{(8*n+2*g)*QS}")
    k("s_waitcnt lgkmcnt(0)\ns_barrier")
    P = ACC
    for m in range(5):
        for w in range(3):
            k(f"ds_read_b128 {vr(P+16*m+4*w,4)}, v{4+m} offset:{w*WP}")
        k(f"v_add_u32 v{4+m}, {3*WP}, v{4+m}")
        k(f"ds_read_b128 {vr(P+16*m+12,4)}, v{4+m}")
        if m == 2:
            k("s_waitcnt lgkmcnt(4)")
    for m in range(5):
        k(f"s_waitcnt vmcnt({4-m if True else 0}) lgkmcnt({max(0, 4*(4-m)) if m >= 2 else 8})" if False else
          f"s_waitcnt lgkmcnt({min(8, 4*(4-m))})")
        b = P + 16 * m
        for e in range(4):
            k(f"v_add_f32 v{b+e}, v{b+e}, v{b+4+e}")
            k(f"v_add_f32 v{b+8+e}, v{b+8+e}, v{b+12+e}")
        for e in range(4):
            k(f"v_add_f32 v{b+e}, v{b+e}, v{b+8+e}")
        k(f"s_waitcnt vmcnt(4)")
        r = RB + 4 * m
        if ffn:
            k(f"""v_lshlrev_b32 v{r+2}, 16, v{r}
            v_and_b32 v{r}, 0xffff0000, v{r}
            v_lshlrev_b32 v{r+3}, 16, v{r+1}
            v_and_b32 v{r+1}, 0xffff0000, v{r+1}
            v_add_f32 v{b}, v{b}, v{r+2}
            v_add_f32 v{b+1}, v{b+1}, v{r}
            v_add_f32 v{b+2}, v{b+2}, v{r+3}
            v_add_f32 v{b+3}, v{b+3}, v{r+1}
            buffer_store_dwordx4 {vr(b,4)}, v{vLA}, s[{sWS}:{sWS+3}], s{sT1} offen
            s_add_u32 s{sT1}, s{sT1}, 4096""")
        else:
            for e in range(4):
                k(f"v_add_f32 v{b+e}, v{b+e}, v{r+e}")
            k(f"""v_cvt_pk_bf16_f32 v{b}, v{b}, v{b+1}
            v_cvt_pk_bf16_f32 v{b+1}, v{b+2}, v{b+3}
            buffer_store_dwordx2 {vr(b,2)}, v{9+m}, s[{sX}:{sX+3}], s{sT0} offen""")
    k(f"{lx}:\ns_endpgm")
    return k, FR + 24 * depth, G2_LDS, None
```

```python
import sys, os
sys.path.insert(0, os.path.dirname(os.path.abspath(__file__)))
from common import *
import k1

HEAD = open(os.path.join(os.path.dirname(os.path.abspath(__file__)), "head.txt")).read()

def build(kernels, out, verbose=False):
    s = HEAD
    for (name, k, vgpr, lds, grid, block, accum) in kernels:
        s += f"; @launch kernel={name} grid=({grid},1,1) block=({block},1,1) lds={lds}\n"
    s += '.amdgcn_target "amdgcn-amd-amdhsa--gfx950"\n'
    for (name, k, vgpr, lds, grid, block, accum) in kernels:
        s += header(name) + k.finish(verbose) + "\n" + descriptor(name, vgpr, accum=accum)
        print(f"{name}: {len(k.lines)} lines, {k.inserted} nops inserted, vgpr {vgpr} lds {lds}")
    open(out, "w").write(s)

if __name__ == "__main__":
    out = sys.argv[1] if len(sys.argv) > 1 else f"cdna_kernels/{NAME}.s"
    ks = []
    k, v, l = k1.gen_k1("k1_kernel")
    ks.append(("k1_kernel", k, v, l, 256, 512, None))
    try:
        import k2
        k, v, l, acc = k2.gen_attn("k2_kernel")
        ks.append(("k2_kernel", k, v, l, 256, 512, acc))
        import k3
        k, v, l, acc = k3.gen_gemm2("k2b_kernel", "ffn2")
        ks.append(("k2b_kernel", k, v, l, 256, 256, acc))
        k, v, l, acc = k3.gen_gemm2("k3_kernel", "oproj")
        ks.append(("k3_kernel", k, v, l, 256, 256, acc))
    except ImportError as e:
        print("skip:", e)
    build(ks, out, "-v" in sys.argv)
```

```python
from asmlib import Kernel

NAME = "parallel_sum__softmax_full_mha__dense_activation_silu__prompt"

import os
WSB = int(os.environ.get('WSB', '0'), 0)
QP = WSB
KP = WSB + 0x280000
VP = WSB + 0x500000
HP = WSB + 0x780000
OP = WSB + 0xE40000
RES = WSB + 0x10C0000
W2T = WSB + 0x15C0000
WOT = WSB + 0x17DC000
XN = WSB + 0x18A4000
FLAGS = WSB + 0x1B24000
FX = FLAGS
FQ = FLAGS + 0x2000
FH = FLAGS + 0x3000
FT = FLAGS + 0x4000
FO = FLAGS + 0x5000
EPOCH = FLAGS + 0x8000
FDUMMY = FLAGS + 0x9000
WS_END = FLAGS + 0xD000
POLL_MAX = 1 << 20
WS_BYTES = 268435456

X_BYTES = 2048 * 640 * 2
WQKV_BYTES = 640 * 1920 * 2
WO_BYTES = 640 * 640 * 2
W1_BYTES = 640 * 1728 * 2
W2_BYTES = 1728 * 640 * 2

LOG2E = 1.4426950408889634


def f32(x):
    import struct
    return "0x%08x" % struct.unpack("<I", struct.pack("<f", x))[0]


def srd(k, d, ptr, nbytes):
    k(f"""s_mov_b32 s{d}, s{ptr}
    s_mov_b32 s{d+1}, s{ptr+1}
    s_mov_b32 s{d+2}, {nbytes}
    s_mov_b32 s{d+3}, 0x00020000""")


def vr(a, n):
    return f"v[{a}:{a+n-1}]"


def header(name):
    return f""".text
.globl {name}
.p2align 8
.type {name},@function
{name}:
"""


def descriptor(name, vgpr, sgpr=96, accum=None):
    if accum is None:
        accum = (vgpr + 3) // 4 * 4
        accum = min(accum, 256)
    return f""".section .rodata,"a"
.p2align 6
.amdhsa_kernel {name}
  .amdhsa_next_free_vgpr {vgpr}
  .amdhsa_next_free_sgpr {sgpr}
  .amdhsa_accum_offset {accum}
  .amdhsa_group_segment_fixed_size 0
  .amdhsa_kernarg_size 72
  .amdhsa_user_sgpr_count 2
  .amdhsa_user_sgpr_kernarg_segment_ptr 1
  .amdhsa_system_sgpr_workgroup_id_x 1
  .amdhsa_float_denorm_mode_32 3
.end_amdhsa_kernel
"""


import os
STAMPS = os.environ.get("STAMP", "0") != "0"
STAMP_OP = "s_memtime" if os.environ.get("STAMP") == "2" else "s_memrealtime"
STAMP_BASE = 0x2000000
SST = 64


def stamp(k, i):
    if STAMPS:
        k(f"{STAMP_OP} s[{SST+2*i}:{SST+2*i+1}]")


def stamp_flush(k, kid, n, sws, swv):
    if not STAMPS:
        return
    k(f"s_mov_b64 exec, -1")
    k(f"{STAMP_OP} s[{SST+2*(n-1)}:{SST+2*(n-1)+1}]\ns_waitcnt lgkmcnt(0)")
    if os.environ.get("DBG") and kid == int(os.environ.get("DBGK", 0)):
        wg, wa, wb = map(int, os.environ["DBG"].split(","))
        sel = [int(x) for x in os.environ.get("DBGSEL", "1,2,3,4,12,13,14,15").split(",")]
        l = k.newlabel("nodbg")
        k(f"""s_cmp_lg_u32 s2, {wg}
        s_cbranch_scc1 {l}
        s_cmp_eq_u32 s{swv}, {wa}
        s_cselect_b32 s62, 0, 32
        s_cselect_b32 s63, 1, 0
        s_cmp_eq_u32 s{swv}, {wb}
        s_cselect_b32 s63, 1, s63
        s_cmp_eq_u32 s63, 0
        s_cbranch_scc1 {l}
        s_load_dwordx2 s[60:61], s[0:1], 56
        s_waitcnt lgkmcnt(0)
        v_mov_b32 v4, s62""")
        for j, i in enumerate(sel):
            k(f"s_sub_u32 s63, s{SST+2*i}, s{SST}\nv_mov_b32 v2, s63\nglobal_store_dword v4, v2, s[60:61] offset:{4*j}\ns_nop 1")
        k(f"{l}:")
    k(f"s_lshl_b32 s62, s2, 4\ns_add_u32 s62, s62, s{swv}\ns_lshl_b32 s62, s62, 7\ns_add_u32 s62, s62, {STAMP_BASE + kid*256*16*128}")
    k("v_mov_b32 v4, 0")
    for i in range(n):
        k(f"v_mov_b32 v2, s{SST+2*i}\nv_mov_b32 v3, s{SST+2*i+1}")
        k(f"buffer_store_dwordx2 v[2:3], v4, s[{sws}:{sws+3}], s62 offen offset:{8*i}")
        k("s_nop 1")


def poll(k, vaddr, vtmp, sws, soff, stag, scnt, width=1):
    l = k.newlabel("poll")
    d = k.newlabel("polled")
    k(f"s_mov_b32 s{scnt}, {POLL_MAX}")
    k(f"{l}:")
    if width == 1:
        k(f"""buffer_load_dword v{vtmp}, v{vaddr}, s[{sws}:{sws+3}], s{soff} offen sc1
        s_waitcnt vmcnt(0)
        v_cmp_ne_u32 vcc, s{stag}, v{vtmp}""")
    else:
        k(f"""buffer_load_dwordx2 v[{vtmp}:{vtmp+1}], v{vaddr}, s[{sws}:{sws+3}], s{soff} offen sc1
        s_waitcnt vmcnt(0)
        v_xor_b32 v{vtmp}, s{stag}, v{vtmp}
        v_xor_b32 v{vtmp+1}, s{stag}, v{vtmp+1}
        v_or_b32 v{vtmp}, v{vtmp}, v{vtmp+1}
        v_cmp_ne_u32 vcc, 0, v{vtmp}""")
    k(f"""s_cbranch_vccz {d}
    s_sleep {int(os.environ.get("PSLEEP", 8))}
    s_sub_u32 s{scnt}, s{scnt}, 1
    s_cmp_lg_u32 s{scnt}, 0
    s_cbranch_scc1 {l}
    {d}:""")


def publish(k, vtmp, sws, soff, stag, nwait=0):
    k(f"""v_mov_b32 v{vtmp}, s{stag}
    v_mov_b32 v{vtmp+1}, 0
    s_waitcnt vmcnt({nwait})
    s_mov_b64 exec, 1
    buffer_store_dword v{vtmp}, v{vtmp+1}, s[{sws}:{sws+3}], s{soff} offen sc1
    s_mov_b64 exec, -1""")


def poll_multi(k, items, vtmp, sws, stag, scnt):
    l = k.newlabel("poll")
    d = k.newlabel("polled")
    k(f"s_mov_b32 s{scnt}, {POLL_MAX}")
    k(f"{l}:")
    for i, (va, so) in enumerate(items):
        k(f"buffer_load_dword v{vtmp+i}, v{va}, s[{sws}:{sws+3}], s{so} offen sc1")
    k("s_waitcnt vmcnt(0)")
    for i in range(len(items)):
        k(f"v_xor_b32 v{vtmp+i}, s{stag}, v{vtmp+i}")
    for i in range(1, len(items)):
        k(f"v_or_b32 v{vtmp}, v{vtmp}, v{vtmp+i}")
    k(f"""v_cmp_ne_u32 vcc, 0, v{vtmp}
    s_cbranch_vccz {d}
    s_sleep {int(os.environ.get("PSLEEP", 8))}
    s_sub_u32 s{scnt}, s{scnt}, 1
    s_cmp_lg_u32 s{scnt}, 0
    s_cbranch_scc1 {l}
    {d}:""")
```

```python
from common import *
import os

SLOT = 49152
NST = 10
PA_LDS = 3 * SLOT

sWS = 8
sWV, sTAG = 12, 13
pX, pWQ, pWO, pW1, pW2, pOUT = 48, 50, 52, 54, 56, 58
sX, sW = 16, 20
sRB, sCT, sLDW, sRH, sCH, sPART, sSA = 24, 25, 26, 27, 28, 29, 30
sM0X, sM0W, sSOX, sSOW, sDU, sLW = 31, 32, 33, 34, 35, 36
sT0, sT1, sT2, sT3 = 40, 41, 42, 43
sPEND, sPEND2 = 60, 61
vL = 1
vXA = 2
vWA = 6
vDX = 8
vDW = 10
vT = 12
F = [32, 48]
ACC = 64
HREG = 128
SC = os.environ.get("SC", "sc1")
BX = os.environ.get("BX", "0") == "1"


def next_stage(k):
    k(f"""s_add_u32 s{sSA}, s{sSA}, 1
    s_cmp_eq_u32 s{sSA}, {NST}
    s_cselect_b32 s{sSA}, 0, s{sSA}""")


def x_dma(k, slot, n):
    k(f"""s_add_u32 m0, s{sM0X}, {slot*SLOT}
    s_lshl_b32 s{sSOX}, s{sSA}, 7
    buffer_load_dwordx4 v{vDX}, s[{sX}:{sX+3}], s{sSOX} offen sc1 lds
    buffer_load_dwordx4 v{vDX+1}, s[{sX}:{sX+3}], s{sSOX} offen offset:1024 sc1 lds""")
    if n == 4:
        k(f"""s_add_u32 s{sSOX}, s{sSOX}, {16*1280-2048}
        buffer_load_dwordx4 v{vDX}, s[{sX}:{sX+3}], s{sSOX} offen offset:2048 sc1 lds
        buffer_load_dwordx4 v{vDX+1}, s[{sX}:{sX+3}], s{sSOX} offen offset:3072 sc1 lds""")


def w_dma(k, slot):
    k(f"""s_lshl_b32 s{sSOW}, s{sSA}, 6
    s_mul_i32 s{sSOW}, s{sSOW}, s{sLDW}""")
    for u in range(8):
        if u % 4 == 0:
            k(f"s_add_u32 m0, s{sM0W}, {slot*SLOT + u*1024}")
            if u:
                k(f"s_add_u32 s{sSOW}, s{sSOW}, 4096")
        if u:
            k(f"s_add_u32 s{sSOW}, s{sSOW}, s{sDU}")
        k(f"buffer_load_dwordx4 v{vDW}, s[{sW}:{sW+3}], s{sSOW} offen offset:{1024*(u%4)} lds")


def x_voff(k, srow0):
    k(f"""v_lshrrev_b32 v{vT}, 3, v{vL}
    v_add_u32 v{vT}, s{srow0}, v{vT}
    v_mul_u32_u24 v{vT}, 1280, v{vT}
    v_and_b32 v{vT+1}, 7, v{vL}
    v_lshrrev_b32 v{vT+2}, 4, v{vL}
    v_xor_b32 v{vT+1}, v{vT+1}, v{vT+2}
    v_lshlrev_b32 v{vT+1}, 4, v{vT+1}
    v_add_u32 v{vDX}, v{vT}, v{vT+1}
    v_xor_b32 v{vT+1}, 64, v{vT+1}
    v_add_u32 v{vDX+1}, v{vT}, v{vT+1}
    v_add_u32 v{vDX+1}, {8*1280-1024}, v{vDX+1}""")


def reads(s, f):
    b = F[f]
    return [
        f"ds_read_b128 {vr(b,4)}, v{vXA+s}",
        f"ds_read_b64_tr_b16 {vr(b+8,2)}, v{vWA} offset:{4096*s}",
        f"ds_read_b64_tr_b16 {vr(b+10,2)}, v{vWA} offset:{4096*s+1024}",
        f"ds_read_b128 {vr(b+4,4)}, v{vXA+s} offset:4096",
        f"ds_read_b64_tr_b16 {vr(b+12,2)}, v{vWA+1} offset:{4096*s}",
        f"ds_read_b64_tr_b16 {vr(b+14,2)}, v{vWA+1} offset:{4096*s+1024}",
    ]


def mfmas(f, ct_orient, first):
    b = F[f]
    out = []
    for (i, bb) in ((0, 0), (0, 1), (1, 0), (1, 1)):
        acc = ACC + 16 * (2 * i + bb)
        x = vr(b + 4 * bb, 4)
        w = vr(b + 8 + 4 * i, 4)
        a, bo = (w, x) if ct_orient else (x, w)
        c = "0" if first else vr(acc, 16)
        out.append(f"v_mfma_f32_32x32x16_bf16 {vr(acc,16)}, {a}, {bo}, {c}")
    return out


def interleave(k, mf, fill):
    n = len(fill)
    per = [n // 4 + (1 if i < n % 4 else 0) for i in range(4)]
    p = 0
    for i in range(4):
        k(mf[i])
        for _ in range(per[i]):
            k(fill[p])
            p += 1


def stage_wait(st):
    return ""


def mainloop(k, ct_orient):
    for st in range(NST):
        last = st == NST - 1
        k.c(f"---- stage {st}")
        if st in (0, 5):
            stamp(k, 3 if st == 0 else 4)
        d = (SLOT if (st % 3) != 2 else -2 * SLOT) & 0xffffffff
        adv = lambda vs: [] if last else [f"v_add_u32 v{v}, {d}, v{v}" for v in vs]
        k("s_waitcnt lgkmcnt(0)")
        interleave(k, mfmas(0, ct_orient, st == 0), reads(1, 1) + adv([vXA]))
        k("s_waitcnt lgkmcnt(0)")
        interleave(k, mfmas(1, ct_orient, False), reads(2, 0) + adv([vXA + 1]))
        k("s_waitcnt lgkmcnt(0)")
        interleave(k, mfmas(0, ct_orient, False), reads(3, 1) + adv([vXA + 2, vXA + 3]) + adv([vWA, vWA + 1]))
        k(f"s_waitcnt {stage_wait(st)}lgkmcnt(0)")
        k("s_barrier")
        interleave(k, mfmas(1, ct_orient, False), [] if last else reads(0, 0))


def idle_loop(k):
    for st in range(NST):
        if stage_wait(st):
            k(f"s_waitcnt {stage_wait(st)}")
        k("s_barrier")


def tile_base(k, dst, tile_bytes):
    k(f"""s_lshl_b32 s{dst}, s{sRB}, 1
    s_add_u32 s{dst}, s{dst}, s{sRH}
    s_mul_i32 s{dst}, s{dst}, {2*tile_bytes}""")


def flag_q(k):
    k(f"""s_lshl_b32 s{sT0}, s{sCT}, 1
    s_add_u32 s{sT0}, s{sT0}, s{sCH}
    s_lshl_b32 s{sT0}, s{sT0}, 5
    s_lshl_b32 s{sT1}, s{sRB}, 1
    s_add_u32 s{sT0}, s{sT0}, s{sT1}
    s_add_u32 s{sT0}, s{sT0}, s{sRH}
    s_lshl_b32 s{sT0}, s{sT0}, 2
    s_add_u32 s{sT0}, s{sT0}, {FQ}""")
    publish(k, vT, sWS, sT0, sTAG)
    k("s_setprio 0")


def epi_qk(k, done):
    lk = k.newlabel("noscale")
    stamp(k, 5)
    k("s_setprio 1")
    tile_base(k, sT2, 40960)
    k(f"""s_cmp_lt_u32 s{sCT}, 5
    s_cselect_b32 s{sT1}, 0, {KP - QP - 5*32*256}
    s_add_u32 s{sT1}, s{sT1}, {QP}
    s_add_u32 s{sT1}, s{sT1}, s{sT2}
    s_lshl_b32 s{sT2}, s{sCT}, 13
    s_add_u32 s{sT1}, s{sT1}, s{sT2}
    s_lshl_b32 s{sT2}, s{sCH}, 12
    s_add_u32 s{sT1}, s{sT1}, s{sT2}
    s_add_u32 s{sT2}, s{sT1}, 40960
    v_lshlrev_b32 v{vT+3}, 3, v{vL}
    s_mov_b32 s{sT0}, {f32(LOG2E/20**0.5)}
    s_cmp_ge_u32 s{sCT}, 5
    s_cbranch_scc1 {lk}""")
    for r in range(64):
        k(f"v_mul_f32 v{ACC+r}, s{sT0}, v{ACC+r}")
    k(f"{lk}:")
    k(f"""s_lshl_b32 s{sT0}, s{sWV}, 13
    s_add_u32 s{sT0}, s{sT0}, 65536
    v_add_u32 v{vT+4}, s{sT0}, v{vT+3}
    v_lshlrev_b32 v{vT+3}, 4, v{vL}
    v_add_u32 v{vT+5}, s{sT0}, v{vT+3}""")
    for b in range(2):
        for i in range(2):
            acc = ACC + 16 * (2 * i + b)
            for g in range(4):
                t = acc + 2 * g
                k(f"v_cvt_pk_bf16_f32 v{t}, v{acc+4*g}, v{acc+4*g+1}")
                k(f"v_cvt_pk_bf16_f32 v{t+1}, v{acc+4*g+2}, v{acc+4*g+3}")
                k(f"ds_write_b64 v{vT+4}, {vr(t,2)} offset:{b*4096 + (8*i+2*g)*256}")
        for j in range(4):
            k(f"ds_read_b128 {vr(32+16*b+4*j,4)}, v{vT+5} offset:{b*4096 + j*1024}")
    for b in range(2):
        for j in range(4):
            k(f"s_waitcnt lgkmcnt({(12 if b == 0 else 0) + 3 - j})")
            k(f"buffer_store_dwordx4 {vr(32+16*b+4*j,4)}, v{vT+3}, s[{sWS}:{sWS+3}], s{sT1+b} offen offset:{j*1024} {SC}")
    stamp(k, 6)
    flag_q(k)
    k(f"s_branch {done}")


def epi_f(k, done):
    stamp(k, 5)
    tile_base(k, sT2, 108 * 1024)
    k(f"""s_lshl_b32 s{sT0}, s{sCT}, 1
    s_add_u32 s{sT0}, s{sT0}, s{sCH}
    s_lshl_b32 s{sT3}, s{sT0}, 12
    s_add_u32 s{sT1}, s{sT3}, s{sT2}
    s_add_u32 s{sT1}, s{sT1}, {HP}
    s_add_u32 s{sT2}, s{sT1}, {108*1024}
    s_mov_b32 s{sT3}, {f32(-LOG2E)}
    v_lshlrev_b32 v{vT+3}, 4, v{vL}""")
    n = 0
    for i in range(2):
        for b in range(2):
            acc = ACC + 16 * (2 * i + b)
            for j in range(2):
                rs = [acc + 8 * j + e for e in range(8)]
                e0 = 48 + 8 * (n % 2)
                for e, r in enumerate(rs):
                    k(f"v_mul_f32 v{e0+e}, s{sT3}, v{r}")
                for e, r in enumerate(rs):
                    k(f"v_exp_f32 v{e0+e}, v{e0+e}")
                for e, r in enumerate(rs):
                    k(f"v_add_f32 v{e0+e}, 1.0, v{e0+e}")
                for e, r in enumerate(rs):
                    k(f"v_rcp_f32 v{e0+e}, v{e0+e}")
                for e, r in enumerate(rs):
                    k(f"v_mul_f32 v{r}, v{r}, v{e0+e}")
                n += 1
                for e in range(4):
                    k(f"v_cvt_pk_bf16_f32 v{HREG + 16*b + 4*(2*i+j) + e}, v{rs[2*e]}, v{rs[2*e+1]}")
    k(f"s_mov_b32 s{sPEND2}, s{sT1}")
    stamp(k, 6)
    k(f"""s_lshl_b32 s{sT1}, s{sRB}, 1
    s_add_u32 s{sT1}, s{sT1}, s{sRH}
    s_lshl_b32 s{sT1}, s{sT1}, 5
    s_add_u32 s{sT0}, s{sT0}, s{sT1}
    s_lshl_b32 s{sT0}, s{sT0}, 2
    s_add_u32 s{sPEND}, s{sT0}, {FH}""")
    k(f"s_branch {done}")


def epi_v(k, done):
    stamp(k, 5)
    k("s_setprio 1")
    tile_base(k, sT2, 40960)
    k(f"""s_sub_u32 s{sT0}, s{sCT}, 10
    s_lshl_b32 s{sT0}, s{sT0}, 11
    s_add_u32 s{sT2}, s{sT2}, s{sT0}
    s_lshl_b32 s{sT0}, s{sCH}, 10
    s_add_u32 s{sT2}, s{sT2}, s{sT0}
    s_add_u32 s{sT0}, s{sT2}, {VP}
    s_add_u32 s{sT1}, s{sT0}, 20480
    s_add_u32 s{sT2}, s{sT0}, 40960
    s_add_u32 s{sT3}, s{sT0}, {40960+20480}
    v_lshrrev_b32 v{vT+3}, 5, v{vL}
    v_mul_u32_u24 v{vT+3}, 10240, v{vT+3}
    v_and_b32 v{vT+4}, 31, v{vL}
    v_lshl_add_u32 v{vT+3}, v{vT+4}, 4, v{vT+3}""")
    n = 0
    for i in range(2):
        for b in range(2):
            acc = ACC + 16 * (2 * i + b)
            for j in range(2):
                t = 32 + 4 * (n % 4)
                n += 1
                for e in range(4):
                    k(f"v_cvt_pk_bf16_f32 v{t+e}, v{acc+8*j+2*e}, v{acc+8*j+2*e+1}")
                k(f"buffer_store_dwordx4 {vr(t,4)}, v{vT+3}, s[{sWS}:{sWS+3}], s{sT0+2*b+j} offen offset:{512*i} {SC}")
    stamp(k, 6)
    flag_q(k)
    k(f"s_branch {done}")


def transposer(k, done):
    sSRC = 20
    sU, sSO, sDST, sTM, sLB = 24, 25, 26, 27, 28
    k(f"""s_mov_b32 s{sSRC+3}, 0x00020000
    s_lshl_b32 s3, s3, 3
    s_add_u32 s3, s3, s{sWV}
    s_mul_i32 s{sLB}, s{sWV}, 15360""")
    for j in range(5):
        k(f"""v_add_u32 v2, {64*j}, v{vL}
        v_mul_u32_u24 v3, 3277, v2
        v_lshrrev_b32 v3, 16, v3
        v_mul_u32_u24 v4, 20, v3
        v_sub_u32 v4, v2, v4
        v_lshlrev_b32 v4, 4, v4
        v_mul_u32_u24 v5, 1280, v3
        v_add_u32 v{10+j}, v4, v5
        v_lshrrev_b32 v{15+j}, 2, v3""")
    k(f"""v_lshrrev_b32 v2, 5, v{vL}
    v_lshlrev_b32 v2, 2, v2
    v_bfe_u32 v3, v{vL}, 2, 2
    v_add_u32 v2, v2, v3
    v_mul_u32_u24 v2, 320, v2
    v_bfe_u32 v3, v{vL}, 4, 1
    v_lshlrev_b32 v3, 5, v3
    v_add_u32 v2, v2, v3
    v_and_b32 v3, 3, v{vL}
    v_lshlrev_b32 v3, 3, v3
    v_add_u32 v2, v2, v3
    v_add_u32 v6, s{sLB}, v2
    v_lshlrev_b32 v7, 4, v{vL}""")

    def unit(r, dst_only):
        k(f"s_add_u32 s{sU}, s3, {128*r}")
        if r == 4:
            k(f"s_cmp_ge_u32 s{sU}, 592\ns_cselect_b32 s{sT0}, 128, 0\ns_sub_u32 s{sU}, s{sU}, s{sT0}")
        k(f"""s_lshr_b32 s{sT0}, s{sU}, 2
        s_and_b32 s{sT1}, s{sU}, 3""")
        if dst_only:
            k(f"""s_mul_i32 s{sDST}, s{sT0}, 20480
            s_mul_i32 s{sT1}, s{sT1}, 5120
            s_add_u32 s{sDST}, s{sDST}, s{sT1}
            s_add_u32 s{sDST}, s{sDST}, {W2T}""")
            return
        k(f"""s_lshl_b32 s{sT2}, s{sT0}, 4
        s_sub_u32 s{sT3}, s{sT0}, 108
        s_mul_i32 s{sT3}, s{sT3}, 20
        s_cmp_ge_u32 s{sT0}, 108
        s_cselect_b32 s{sT2}, s{sT3}, s{sT2}
        s_cselect_b32 s{sSRC}, s{pWO}, s{pW2}
        s_cselect_b32 s{sSRC+1}, s{pWO+1}, s{pW2+1}
        s_mov_b32 s{sT3}, {W2_BYTES}
        s_cselect_b32 s{sSRC+2}, {WO_BYTES}, s{sT3}
        s_sub_u32 s{sT3}, s{sT0}, 140
        s_mul_i32 s{sT3}, s{sT3}, 80
        s_add_u32 s{sT3}, s{sT3}, 16
        s_cmp_ge_u32 s{sT0}, 140
        s_cselect_b32 s{sT2}, s{sT3}, s{sT2}
        s_cselect_b32 s{sTM}, 20480, 0
        s_mul_i32 s{sSO}, s{sT2}, 1280
        s_mul_i32 s{sT1}, s{sT1}, 320
        s_add_u32 s{sSO}, s{sSO}, s{sT1}""")
        for j in range(5):
            k(f"""s_add_u32 m0, s{sLB}, {(r % 3)*5120 + j*1024}
            v_mad_u32_u24 v8, v{15+j}, s{sTM}, v{10+j}
            buffer_load_dwordx4 v8, s[{sSRC}:{sSRC+3}], s{sSO} offen lds""")

    assert WOT == W2T + 108 * 20480
    for r in range(3):
        unit(r, False)
    waits = [10, 15, 20, 20, 15]
    for r in range(5):
        k(f"s_waitcnt vmcnt({waits[r]})")
        base = 32 + 20 * (r % 2)
        for nb in range(5):
            for t in range(2):
                k(f"ds_read_b64_tr_b16 {vr(base+4*nb+2*t,2)}, v6 offset:{(r%3)*5120 + t*8*320 + nb*64}")
        k("s_waitcnt lgkmcnt(0)")
        if r + 3 < 5:
            unit(r + 3, False)
        unit(r, True)
        for nb in range(5):
            if nb == 4:
                k(f"s_add_u32 s{sDST}, s{sDST}, 4096")
            k(f"buffer_store_dwordx4 {vr(base+4*nb,4)}, v7, s[{sWS}:{sWS+3}], s{sDST} offen offset:{1024*nb if nb < 4 else 0} {SC}")
    k(f"s_lshl_b32 s{sT0}, s3, 2\ns_add_u32 s{sT0}, s{sT0}, {FT}")
    publish(k, 2, sWS, sT0, sTAG)
    for i in range(3, 7):
        stamp(k, i)
    k(f"s_branch {done}")


def entry(k, lexit):
    stamp(k, 0)
    k(f"""s_cmp_ge_u32 s2, 256
    s_cbranch_scc1 {lexit}
    s_load_dwordx4 s[{pX}:{pX+3}], s[0:1], 0
    s_load_dwordx2 s[{pWO}:{pWO+1}], s[0:1], 16
    s_load_dwordx4 s[{pW1-2}+2:{pW1+3}], s[0:1], 32
    s_load_dwordx2 s[{pOUT}:{pOUT+1}], s[0:1], 48
    s_load_dwordx2 s[4:5], s[0:1], 64
    v_and_b32 v{vL}, 63, v0
    v_lshrrev_b32 v2, 6, v0
    s_nop 0
    v_readfirstlane_b32 s{sWV}, v2
    s_waitcnt lgkmcnt(0)""".replace(f"s[{pW1-2}+2:{pW1+3}]", f"s[44:47]"))
    k(f"""s_mov_b32 s{pW1}, s44
    s_mov_b32 s{pW1+1}, s45
    s_mov_b32 s{pW2}, s46
    s_mov_b32 s{pW2+1}, s47
    s_add_u32 s6, s4, {EPOCH}
    s_addc_u32 s7, s5, 0
    s_load_dword s{sTAG}, s[6:7], 0""")
    srd(k, sWS, 4, WS_BYTES)
    k(f"""s_lshl_b32 s{sPEND}, s2, 4
    s_add_u32 s{sPEND}, s{sPEND}, s{sWV}
    s_lshl_b32 s{sPEND}, s{sPEND}, 2
    s_add_u32 s{sPEND}, s{sPEND}, {FDUMMY}
    s_mov_b32 s{sPEND2}, 0""")


def phase0(k):
    srd(k, sX, pX, X_BYTES)
    k(f"""s_lshl_b32 s{sT0}, s2, 3
    s_add_u32 s{sT0}, s{sT0}, s{sWV}
    s_mul_i32 s{sT1}, s{sT0}, 1280
    v_lshlrev_b32 v2, 4, v{vL}""")
    for r in range(16, 24):
        k(f"v_mov_b32 v{r}, 0")
    k(f"""s_mov_b32 exec_lo, -1
    s_mov_b32 exec_hi, 0xff
    buffer_load_dwordx4 v[16:19], v2, s[{sX}:{sX+3}], s{sT1} offen
    buffer_load_dwordx4 v[20:23], v2, s[{sX}:{sX+3}], s{sT1} offen offset:640
    s_mov_b64 exec, -1""")
    if os.environ.get("WARM"):
        k(f"""v_mov_b32 v24, {WS_END}
        buffer_load_dword v25, v24, s[{sWS}:{sWS+3}], 0 offen
        v_mov_b32 v24, {XN - 256}
        buffer_load_dword v26, v24, s[{sWS}:{sWS+3}], 0 offen""")
    k(f"""s_mov_b32 s{sT2}, 0x3f803f80
    v_mov_b32 v4, 0
    v_mov_b32 v5, 0
    s_add_u32 s{sT1}, s{sT1}, {XN}
    s_lshl_b32 s{sT0}, s{sT0}, 2
    s_add_u32 s{sT0}, s{sT0}, {FX}
    s_waitcnt lgkmcnt(0)
    s_barrier
    s_mul_i32 s{sTAG}, s{sTAG}, 1664525
    s_add_u32 s{sTAG}, s{sTAG}, 1013904223
    s_waitcnt vmcnt(0)""")
    stamp(k, 1)
    for r in range(16, 24):
        k(f"v_dot2_f32_bf16 v4, v{r}, s{sT2}, v4")
        k(f"v_dot2_f32_bf16 v5, v{r}, v{r}, v5")
    for sh in (8, 4, 2, 1):
        k(f"v_add_f32_dpp v4, v4, v4 row_ror:{sh} row_mask:0xf bank_mask:0xf")
        k(f"v_add_f32_dpp v5, v5, v5 row_ror:{sh} row_mask:0xf bank_mask:0xf")
    for op in ("v_permlane16_swap_b32", "v_permlane32_swap_b32"):
        k(f"""v_mov_b32 v6, v4
        v_mov_b32 v7, v5
        {op} v4, v6
        {op} v5, v7
        v_add_f32 v4, v4, v6
        v_add_f32 v5, v5, v7""")
    k(f"""v_mul_f32 v4, {f32(1/640)}, v4
    v_mul_f32 v5, {f32(1/640)}, v5
    v_fma_f32 v5, -v4, v4, v5
    v_max_f32 v5, 0, v5
    v_add_f32 v5, {f32(1e-5)}, v5
    v_rsq_f32 v5, v5
    v_mul_f32 v4, v4, v5""")
    for r in range(16, 24):
        k(f"""v_lshlrev_b32 v6, 16, v{r}
        v_and_b32 v7, 0xffff0000, v{r}
        v_fma_f32 v6, v6, v5, -v4
        v_fma_f32 v7, v7, v5, -v4
        v_cvt_pk_bf16_f32 v{r}, v6, v7""")
    k(f"""s_mov_b32 exec_lo, -1
    s_mov_b32 exec_hi, 0xff
    buffer_store_dwordx4 v[16:19], v2, s[{sWS}:{sWS+3}], s{sT1} offen sc1
    buffer_store_dwordx4 v[20:23], v2, s[{sWS}:{sWS+3}], s{sT1} offen offset:640 sc1
    s_mov_b64 exec, -1""")
    publish(k, 6, sWS, sT0, sTAG)
    stamp(k, 2)


def tile_ids(k, ltr):
    ln = k.newlabel("gemm")
    k(f"""s_and_b32 s3, s2, 7
    s_lshr_b32 s4, s2, 3
    s_cmp_ge_u32 s4, 30
    s_cbranch_scc0 {ln}
    s_lshl_b32 s3, s3, 1
    s_add_u32 s3, s3, s4
    s_sub_u32 s3, s3, 30
    s_branch {ltr}
    {ln}:
    s_mul_i32 s3, s3, 30
    s_add_u32 s3, s3, s4
    s_cmp_ge_u32 s3, 120
    s_cselect_b32 s4, 120, 0
    s_cselect_b32 s5, 8, 0
    s_sub_u32 s3, s3, s4
    s_lshr_b32 s{sCT}, s3, 3
    s_and_b32 s3, s3, 7
    s_add_u32 s{sRB}, s3, s5
    s_mul_i32 s4, s{sCT}, {int(os.environ.get("ROTC", 3))}
    s_mul_i32 s3, s3, {int(os.environ.get("ROTR", 1))}
    s_add_u32 s3, s3, s4
    s_mul_i32 s4, s3, 6554
    s_lshr_b32 s4, s4, 16
    s_mul_i32 s4, s4, 10
    s_sub_u32 s{sSA}, s3, s4""")
    k(f"""s_add_u32 s{sX}, s{sWS}, {XN}
    s_addc_u32 s{sX+1}, s{sWS+1}, 0
    s_mov_b32 s{sX+2}, {X_BYTES}
    s_mov_b32 s{sX+3}, 0x00020000""")


def phase_a(k, done):
    lload = k.newlabel("loader")
    ltr = k.newlabel("retile")
    lv = k.newlabel("vpart")
    lf = k.newlabel("fpart")
    lidle = k.newlabel("idle")
    ltl = k.newlabel("retile_loader")
    k(f"s_cmp_ge_u32 s{sWV}, 8\ns_cbranch_scc1 {lload}")
    phase0(k)
    tile_ids(k, ltr)
    k(f"""s_and_b32 s{sRH}, s{sWV}, 1
    s_bfe_u32 s{sCH}, s{sWV}, 0x10001
    s_lshr_b32 s{sPART}, s{sWV}, 2
""")
    k(f"""v_and_b32 v{vT}, 31, v{vL}
    v_lshrrev_b32 v{vT+1}, 5, v{vL}
    v_bfe_u32 v{vT+2}, v{vL}, 1, 3
    v_xor_b32 v{vT+2}, v{vT+2}, v{vT+1}
    s_lshl_b32 s{sT1}, s{sRH}, 13
    v_lshlrev_b32 v{vT+3}, 7, v{vT}
    v_add_u32 v{vT+3}, s{sT1}, v{vT+3}""")
    for s in range(4):
        k(f"""v_xor_b32 v{vT+4}, {2*s}, v{vT+2}
        v_lshl_add_u32 v{vXA+s}, v{vT+4}, 4, v{vT+3}""")
    k(f"""v_bfe_u32 v{vT+2}, v{vL}, 2, 2
    v_lshl_add_u32 v{vT+3}, v{vT+1}, 3, v{vT+2}
    v_lshlrev_b32 v{vT+3}, 8, v{vT+3}
    v_bfe_u32 v{vT+4}, v{vL}, 4, 1
    v_lshl_add_u32 v{vT+3}, v{vT+4}, 5, v{vT+3}
    v_and_b32 v{vT+4}, 3, v{vL}
    v_lshl_add_u32 v{vT+3}, v{vT+4}, 3, v{vT+3}
    s_lshl_b32 s{sT1}, s{sPART}, 14
    s_add_u32 s{sT1}, s{sT1}, 16384
    v_add_u32 v{vT+3}, s{sT1}, v{vT+3}
    s_lshl_b32 s{sT2}, s{sCH}, 1""")
    for b in range(2):
        k(f"""s_add_u32 s{sT3}, s{sT2}, {b}
        v_xor_b32 v{vT+4}, s{sT3}, v{vT+2}
        v_lshl_add_u32 v{vWA+b}, v{vT+4}, 6, v{vT+3}""")
    k("s_barrier")
    k(f"""s_lshl_b32 s{sT0}, s{sCT}, 1
    s_add_u32 s{sT0}, s{sT0}, s{sCH}
    s_cmp_ge_u32 s{sT0}, 27
    s_cselect_b32 s{sT0}, s{sPART}, 0
    s_cmp_eq_u32 s{sT0}, 1
    s_cbranch_scc1 {lidle}""")
    for r in reads(0, 0):
        k(r)
    k(f"""s_cmp_ge_u32 s{sCT}, 10
    s_cselect_b32 s{sT0}, 1, 0
    s_cmp_eq_u32 s{sPART}, 0
    s_cselect_b32 s{sT0}, s{sT0}, 0
    s_cmp_eq_u32 s{sT0}, 1
    s_cbranch_scc1 {lv}""")
    mainloop(k, True)
    k(f"s_cmp_eq_u32 s{sPART}, 1\ns_cbranch_scc1 {lf}")
    epi_qk(k, done)
    k(f"{lf}:")
    epi_f(k, done)
    k(f"{lv}:")
    mainloop(k, False)
    epi_v(k, done)
    k(f"{lidle}:")
    idle_loop(k)
    for i in range(3, 7):
        stamp(k, i)
    k(f"s_branch {done}")
    k(f"{ltr}:")
    transposer(k, done)
    k(f"{lload}:")
    tile_ids(k, ltl)
    k(f"""s_sub_u32 s{sLW}, s{sWV}, 8
    s_lshr_b32 s{sPART}, s{sLW}, 1
    s_cmp_eq_u32 s{sPART}, 0
    s_cselect_b32 s{sW}, s{pWQ}, s{pW1}
    s_cselect_b32 s{sW+1}, s{pWQ+1}, s{pW1+1}
    s_mov_b32 s{sT0}, {W1_BYTES}
    s_cselect_b32 s{sW+2}, {WQKV_BYTES}, s{sT0}
    s_mov_b32 s{sW+3}, 0x00020000
    s_mov_b32 s{sT0}, 3456
    s_cselect_b32 s{sLDW}, 3840, s{sT0}
    s_lshl_b32 s{sDU}, s{sLDW}, 2
    s_sub_u32 s{sDU}, s{sDU}, 1024
    s_lshl_b32 s{sM0X}, s{sLW}, 12
    s_lshl_b32 s{sM0W}, s{sLW}, 13
    s_add_u32 s{sM0W}, s{sM0W}, 16384
    s_and_b32 s{sT0}, s{sLW}, 1
    s_lshl_b32 s{sT0}, s{sT0}, 5
    v_lshrrev_b32 v{vT}, 4, v{vL}
    v_add_u32 v{vT+1}, s{sT0}, v{vT}
    v_mul_lo_u32 v{vT+1}, v{vT+1}, s{sLDW}
    v_and_b32 v{vT+2}, 15, v{vL}
    v_lshlrev_b32 v{vT}, 2, v{vT}
    v_xor_b32 v{vT+2}, v{vT+2}, v{vT}
    v_lshlrev_b32 v{vT+2}, 4, v{vT+2}
    s_lshl_b32 s{sT1}, s{sCT}, 8
    v_add3_u32 v{vDW}, v{vT+1}, v{vT+2}, s{sT1}""")
    k(f"""s_cmp_eq_u32 s{sCT}, 14
    s_cselect_b32 s{sT0}, s{sPART}, 0
    s_cmp_eq_u32 s{sT0}, 1
    s_cselect_b32 s{sW+2}, 0, s{sW+2}""")
    w_dma(k, 0)
    k(f"""s_lshl_b32 s{sT0}, s{sRB}, 7
    s_lshl_b32 s{sT1}, s{sLW}, 5
    s_add_u32 s{sT0}, s{sT0}, s{sT1}""")
    x_voff(k, sT0)
    k(f"""s_waitcnt lgkmcnt(0)
    s_barrier
    s_mul_i32 s{sTAG}, s{sTAG}, 1664525
    s_add_u32 s{sTAG}, s{sTAG}, 1013904223""")
    k(f"""v_and_b32 v{vT}, 31, v{vL}
    v_lshlrev_b32 v{vT}, 2, v{vT}
    s_lshl_b32 s{sT0}, s{sT0}, 2
    s_add_u32 s{sT0}, s{sT0}, {FX}""")
    poll(k, vT, vT + 1, sWS, sT0, sTAG, sT1)
    stamp(k, 1)
    x_dma(k, 0, 4)
    next_stage(k)
    x_dma(k, 1, 4)
    w_dma(k, 1)
    next_stage(k)
    k("s_waitcnt vmcnt(12)")
    stamp(k, 2)
    k("s_barrier")
    x_dma(k, 2, 4)
    w_dma(k, 2)
    next_stage(k)
    for st in range(NST):
        if st in (0, 5):
            stamp(k, 3 if st == 0 else 4)
        n = 12 if st + 2 < NST else 0
        k(f"s_waitcnt vmcnt({n})\ns_barrier")
        if st + 3 < NST:
            x_dma(k, st % 3, 4)
            w_dma(k, st % 3)
            next_stage(k)
    stamp(k, 5)
    stamp(k, 6)
    k(f"s_branch {done}")
    k(f"""{ltl}:
    s_waitcnt lgkmcnt(0)
    s_barrier
    s_mul_i32 s{sTAG}, s{sTAG}, 1664525
    s_add_u32 s{sTAG}, s{sTAG}, 1013904223""")
    for i in range(1, 7):
        stamp(k, i)
    k(f"s_branch {done}")
```

```python
from common import *
from pa import sWS, sWV, sTAG, pX, pOUT, vL, sPEND, sPEND2, HREG
import os

TS = 2624
CH = 8 * TS
NSLOT = 3
PART = NSLOT * CH
QS = 576
WP = 40 * QS
PB_LDS = PART + 4 * WP
PRIO = os.environ.get('PRIO', '1') == '1'

sH, sQT, sC, sSO, sM0, sNX = 14, 15, 16, 17, 18, 19
sE1, sE2, sLO, sHI, sVM = 20, 22, 24, 26, 28
sT0, sT1, sT2, sT3 = 30, 31, 32, 33
sX = 36
sLW, sTT, sNQ, sA, sB, sQ4 = 40, 41, 42, 43, 44, 45
vQM, vQT, vKM, vKT = 4, 8, 10, 14
vV = [16, 20]
vP = [24, 28]
vS = [32, 48]
vO = 64
vCUR = 80
vNXT = 83
vT = 90
vLA = 2
vD = 4
ACC = 16
FR = 96
DEPTH = 3
STEPS = [int(x) for x in os.environ.get("FSTEPS", "0,1,5,5,4,4,4,4").split(",")]
vXR = 160
vFA = 164


def dma(k, c):
    for u in range(2):
        k(f"""s_add_u32 m0, s{sM0}, {(c % NSLOT)*CH + u*TS}
        s_mov_b32 s{sSO}, {(8*c+u)*40960}
        buffer_load_dwordx4 v{vD}, s[{sWS}:{sWS+3}], s{sSO} offen sc1 lds
        s_mov_b64 exec, s[{sE1}:{sE1+1}]
        buffer_load_dwordx4 v{vD+1}, s[{sWS}:{sWS+3}], s{sSO} offen offset:1024 sc1 lds
        s_mov_b64 exec, s[{sE2}:{sE2+1}]
        buffer_load_dwordx4 v{vD+2}, s[{sWS}:{sWS+3}], s{sSO} offen offset:2048 sc1 lds
        s_mov_b64 exec, -1""")


def _a(t):
    return (vCUR, t * TS) if t < 8 else (vNXT, (t - 8) * TS)


def rd_kt(t):
    a, o = _a(t)
    return f"ds_read_b64 {vr(vKT,2)}, v{a+1} offset:{o}"


def rd_km(t):
    a, o = _a(t)
    return f"ds_read_b64 {vr(vKM,2)}, v{a} offset:{o}\nds_read_b64 {vr(vKM+2,2)}, v{a} offset:{o+256}"


def rd_v(j, t):
    a, o = _a(t)
    return f"ds_read_b128 {vr(vV[j],4)}, v{a+2} offset:{o+672*j}"


def m_tail(s):
    return f"v_mfma_f32_32x32x8_bf16 {vr(s,16)}, {vr(vKT,2)}, {vr(vQT,2)}, 0"


def m_main(s):
    return f"v_mfma_f32_32x32x16_bf16 {vr(s,16)}, {vr(vKM,4)}, {vr(vQM,4)}, {vr(s,16)}"


def m_pv(j):
    return f"v_mfma_f32_32x32x16_bf16 {vr(vO,16)}, {vr(vV[j],4)}, {vr(vP[j],4)}, {vr(vO,16)}"


def tile(k, tt):
    s = vS[tt % 2]
    sn = vS[(tt + 1) % 2]
    E = lambda r: f"v_exp_f32 v{s+r}, v{s+r}"
    C = lambda i: f"v_cvt_pk_bf16_f32 v{vP[i//4]+i%4}, v{s+2*i}, v{s+2*i+1}"
    mids = [
        "s_waitcnt lgkmcnt(1)\n" + m_pv(1) + "\n" + rd_v(1, tt),
        m_tail(sn) + "\n" + rd_kt(tt + 2),
        m_main(sn) + "\n" + rd_km(tt + 2),
        "s_waitcnt lgkmcnt(4)\n" + m_pv(0) + "\n" + rd_v(0, tt + 1),
    ]
    if PRIO:
        k(f"s_setprio {2 - tt % 3 if tt < 6 else 7 - tt}")
    for g in range(4):
        if tt == 6 and g == 1:
            k("s_barrier")
        k(E(4 * g))
        k(E(4 * g + 1))
        k(mids[g])
        k(E(4 * g + 2))
        k(E(4 * g + 3))
        k(C(2 * g))
        k(C(2 * g + 1))


def ids(k):
    k(f"""s_and_b32 s3, s2, 7
    s_lshr_b32 s6, s2, 3
    s_lshr_b32 s7, s6, 3
    s_lshl_b32 s{sH}, s3, 2
    s_add_u32 s{sH}, s{sH}, s7
    s_and_b32 s{sQT}, s6, 7
    s_lshl_b32 s{sQT}, s{sQT}, 3
    s_add_u32 s{sQT}, s{sQT}, s{sWV}
    s_and_b32 s{sNQ}, s6, 3
    s_lshr_b32 s6, s6, 2
    s_lshl_b32 s3, s3, 3
    s_add_u32 s{sTT}, s3, s6
    s_and_b32 s{sQ4}, s{sWV}, 3
    s_mul_i32 s{sT0}, s{sH}, 20
    s_add_u32 s{sT1}, s{sT0}, 19
    s_lshr_b32 s{sT0}, s{sT0}, 6
    s_lshr_b32 s{sT1}, s{sT1}, 6
    s_sub_u32 s{sT1}, s{sT1}, s{sT0}
    s_lshl_b32 s{sT0}, s{sT0}, 7
    s_lshl_b32 s{sT1}, s{sT1}, 7
    v_lshrrev_b32 v3, 5, v{vL}
    v_mul_u32_u24 v2, s{sT1}, v3
    v_add_u32 v2, s{sT0}, v2""")


def wot_addr(k, nb0):
    k(f"""s_mul_i32 s{sB}, s{sNQ}, 5120
    s_add_u32 s{sB}, s{sB}, {WOT}
    s_add_u32 s{sB}, s{sB}, {nb0}
    s_mul_i32 s{sA}, s{sQ4}, {2*20480}
    s_add_u32 s{sA}, s{sA}, s{sB}
    s_add_u32 s{sA}, s{sA}, {32*20480}
    s_mul_i32 s{sT3}, s{sQ4}, {8*20480}
    s_add_u32 s{sB}, s{sB}, s{sT3}""")


def final_addr(k):
    srd(k, sX, pX, X_BYTES)
    k(f"""s_cmp_ge_u32 s{sWV}, 5
    s_cselect_b32 s{sT0}, 5, 0
    s_cselect_b32 s{sT1}, 16, 0
    s_sub_u32 s{sT0}, s{sWV}, s{sT0}
    s_lshl_b32 s{sT0}, s{sT0}, 3
    v_and_b32 v{vFA}, 7, v{vL}
    v_add_u32 v{vFA}, s{sT0}, v{vFA}
    v_lshrrev_b32 v{vFA+2}, 3, v{vL}
    v_add_u32 v{vFA+2}, s{sT1}, v{vFA+2}
    v_mul_u32_u24 v{vFA+1}, 1280, v{vFA+2}
    v_lshl_add_u32 v{vFA+1}, v{vFA}, 3, v{vFA+1}
    v_mul_u32_u24 v{vFA}, {QS}, v{vFA}
    v_lshl_add_u32 v{vFA}, v{vFA+2}, 4, v{vFA}
    v_add_u32 v{vFA}, {PART}, v{vFA}
    s_mul_i32 s{sSO}, s{sTT}, {32*1280}
    s_mul_i32 s{sT1}, s{sNQ}, 320
    s_add_u32 s{sSO}, s{sSO}, s{sT1}
    s_add_u32 s{sM0}, s{sSO}, {8*1280}
    buffer_load_dwordx2 {vr(vXR,2)}, v{vFA+1}, s[{sX}:{sX+3}], s{sSO} offen
    buffer_load_dwordx2 {vr(vXR+2,2)}, v{vFA+1}, s[{sX}:{sX+3}], s{sM0} offen""")


def part_addr(k, v):
    k(f"""v_lshrrev_b32 v{v}, 5, v{vL}
    v_mul_u32_u24 v{v}, {QS}, v{v}
    v_and_b32 v3, 31, v{vL}
    v_lshl_add_u32 v{v}, v3, 4, v{v}
    s_mul_i32 s{sT2}, s{sQ4}, {WP}
    s_add_u32 s{sT2}, s{sT2}, {PART}
    v_add_u32 v{v}, s{sT2}, v{v}""")


def proj(k, accs, bfr, afr, woff):
    off = lambda u: (u if u < 8 else None)
    k(f"""v_lshlrev_b32 v3, 4, v{vL}
    s_lshl_b32 s{sT0}, s{sQ4}, 13
    v_add_u32 v{vFA+3}, s{sT0}, v3
    s_lshl_b32 s{sT0}, s{sQ4}, 11
    s_add_u32 s{sT0}, s{sT0}, 32768
    v_add_u32 v3, s{sT0}, v3""")
    rd = lambda u: (f"ds_read_b128 {vr(afr+4*(u%3),4)}, v{vFA+3} offset:{1024*u}" if u < 8 else
                    f"ds_read_b128 {vr(afr+4*(u%3),4)}, v3 offset:{1024*(u-8)}")
    k("s_waitcnt vmcnt(0) lgkmcnt(0)\ns_barrier")
    stamp(k, 13)
    k(rd(0))
    k(rd(1))
    for u in range(10):
        if u + 2 < 10:
            k(rd(u + 2))
        k(f"s_waitcnt lgkmcnt({min(2, 9-u)})")
        for n, acc in enumerate(accs):
            k(f"v_mfma_f32_32x32x16_bf16 {vr(acc,16)}, {vr(bfr(u, n),4)}, {vr(afr+4*(u%3),4)}, {vr(acc,16)}")
    for n, acc in enumerate(accs):
        for g in range(4):
            k(f"ds_write_b128 v{vFA+2}, {vr(acc+4*g,4)} offset:{woff + (8*n+2*g)*QS}")
    k("s_waitcnt lgkmcnt(0)\ns_barrier")
    stamp(k, 14)


def final(k, lend):
    P = 96
    k(f"s_cmp_ge_u32 s{sWV}, 10\ns_cbranch_scc1 {lend}")
    k(f"v_add_u32 v3, {2*WP}, v{vFA}")
    for it in range(2):
        for w in range(4):
            a = f"v{vFA}" if w < 2 else "v3"
            k(f"ds_read_b128 {vr(P+16*it+4*w,4)}, {a} offset:{(w%2)*WP + it*128}")
    k(f"""s_mov_b32 s{sX}, s{pOUT}
    s_mov_b32 s{sX+1}, s{pOUT+1}""")
    for it in range(2):
        b = P + 16 * it
        r = vXR + 2 * it
        k(f"""v_lshlrev_b32 v{b+32}, 16, v{r}
        v_and_b32 v{b+33}, 0xffff0000, v{r}
        v_lshlrev_b32 v{b+34}, 16, v{r+1}
        v_and_b32 v{b+35}, 0xffff0000, v{r+1}
        s_waitcnt lgkmcnt({4*(1-it)})""")
        for e in range(4):
            k(f"v_add_f32 v{b+e}, v{b+e}, v{b+4+e}")
            k(f"v_add_f32 v{b+8+e}, v{b+8+e}, v{b+12+e}")
        for e in range(4):
            k(f"v_add_f32 v{b+e}, v{b+e}, v{b+8+e}")
        for e in range(4):
            k(f"v_add_f32 v{b+e}, v{b+e}, v{b+32+e}")
        k(f"""v_cvt_pk_bf16_f32 v{b}, v{b}, v{b+1}
        v_cvt_pk_bf16_f32 v{b+1}, v{b+2}, v{b+3}
        buffer_store_dwordx2 {vr(b,2)}, v{vFA+1}, s[{sX}:{sX+3}], s{sSO if it == 0 else sM0} offen""")
    k(f"s_branch {lend}")


def f_loads(k, slot):
    b = FR + 24 * slot
    k(f"buffer_load_dwordx4 {vr(b,4)}, v{vLA}, s[{sWS}:{sWS+3}], s{sA} offen sc1")
    for n in range(4):
        k(f"buffer_load_dwordx4 {vr(b+4+4*n,4)}, v{vLA}, s[{sWS}:{sWS+3}], s{sB} offen offset:{1024*n} sc1")
    k(f"buffer_load_dwordx4 {vr(b+20,4)}, v{vLA+1}, s[{sWS}:{sWS+3}], s{sB} offen sc1")
    k(f"s_add_u32 s{sA}, s{sA}, 1024\ns_add_u32 s{sB}, s{sB}, 20480")


def f_mf(k, slot, first):
    b = FR + 24 * slot
    for n in range(5):
        acc = ACC + 16 * n
        c = "0" if first else vr(acc, 16)
        k(f"v_mfma_f32_32x32x16_bf16 {vr(acc,16)}, {vr(b+4+4*n,4)}, {vr(b,4)}, {c}")


def ffn_waves(k, lend):
    assert sum(STEPS) == 27 and len(STEPS) == 8
    k(f"s_setprio {os.environ.get('FPRIO', 0)}")
    k(f"""s_mov_b32 s{sE1}, -1
    s_mov_b32 s{sE1+1}, {(~((1 << (36-32)) | (1 << (57-32)))) & 0xffffffff:#x}
    s_mov_b32 s{sE2}, {(~(1 << 14)) & 0xffffffff:#x}
    s_mov_b32 s{sE2+1}, 7
    v_and_b32 v12, 31, v{vL}
    v_lshl_add_u32 v12, v12, 2, v2
    v_and_b32 v13, 3, v{vL}
    v_lshl_add_u32 v13, v13, 2, v2
    s_mov_b32 s{sLW}, s{sQ4}
    s_mul_i32 s{sT0}, s{sLW}, {2*40960}
    s_mul_i32 s{sT1}, s{sH}, 1280
    s_add_u32 s{sT1}, s{sT1}, s{sT0}
    s_add_u32 s{sT1}, s{sT1}, {KP}
    s_mul_i32 s{sT2}, s{sH}, 320
    s_add_u32 s{sT2}, s{sT2}, s{sT0}
    s_add_u32 s{sT2}, s{sT2}, {VP}
    v_lshlrev_b32 v{vLA}, 4, v{vL}
    v_add_u32 v{vLA+1}, 4096, v{vLA}
    v_add_u32 v{vD}, s{sT1}, v{vLA}""")
    for i in (1, 2):
        k(f"""v_add_u32 v8, {(64*i-80) & 0xffffffff}, v{vL}
        v_max_i32 v8, 0, v8
        v_mul_u32_u24 v9, 3121, v8
        v_lshrrev_b32 v9, 16, v9
        v_mul_u32_u24 v10, 21, v9
        v_sub_u32 v10, v8, v10
        v_mul_u32_u24 v9, 10240, v9
        v_lshl_add_u32 v9, v10, 4, v9
        v_add_u32 v9, s{sT2}, v9
        v_add_u32 v{vD+i}, {(-1024*i) & 0xffffffff}, v9""")
    k(f"""s_mov_b64 exec, 0xffff
    v_mov_b32 v{vD+1}, v{vD}
    s_mov_b64 exec, -1
    s_mul_i32 s{sM0}, s{sLW}, {2*TS}
    s_mov_b32 s{sT0}, {FQ + 10*128}
    s_mov_b32 s{sT1}, {FQ + 20*128}
    s_lshr_b32 s{sT2}, s{sQT}, 3
    s_sub_u32 s{sT2}, s{sT2}, 1
    s_lshl_b32 s{sT2}, s{sT2}, 4
    s_add_u32 s{sT2}, s{sT2}, {FQ}""")
    stamp(k, 7)
    lnp = k.newlabel("nopoll")
    k(f"s_barrier\ns_cmp_lg_u32 s{sLW}, 0\ns_cbranch_scc1 {lnp}")
    poll_multi(k, [(12, sT0), (12, sT1), (13, sT2)], 8, sWS, sTAG, sT3)
    k(f"{lnp}:\ns_barrier")
    stamp(k, 8)
    dma(k, 0)
    dma(k, 1)
    k(f"""s_mul_i32 s{sT0}, s{sLW}, 27
    s_mul_i32 s{sA}, s{sTT}, {108*1024}
    s_lshl_b32 s{sT1}, s{sT0}, 10
    s_add_u32 s{sA}, s{sA}, s{sT1}
    s_add_u32 s{sA}, s{sA}, {HP}
    s_mul_i32 s{sB}, s{sT0}, 20480
    s_mul_i32 s{sT1}, s{sNQ}, 5120
    s_add_u32 s{sB}, s{sB}, s{sT1}
    s_add_u32 s{sB}, s{sB}, {W2T}""")
    k("s_waitcnt vmcnt(6)\ns_barrier")
    stamp(k, 9)
    lb = k.newlabel("nobump")
    k(f"""s_add_u32 s{sT0}, s2, s{sLW}
    s_cmp_lg_u32 s{sT0}, 0
    s_cbranch_scc1 {lb}
    s_mov_b32 s{sT0}, {EPOCH}""")
    publish(k, 8, sWS, sT0, sTAG)
    k(f"s_waitcnt vmcnt(0)\n{lb}:")
    q = [("dma", 1)] * 6

    def wait_for(tag):
        idx = max(i for i, t in enumerate(q) if t == tag)
        k(f"s_waitcnt vmcnt({len(q) - 1 - idx})")
        del q[:idx + 1]

    step = 0
    for c in range(8):
        if step == 0 and STEPS[c]:
            k(f"""v_min_u32 v12, 26, v{vL}
            v_lshlrev_b32 v12, 2, v12
            s_lshr_b32 s{sT0}, s{sTT}, 1
            s_lshl_b32 s{sT0}, s{sT0}, 7
            s_add_u32 s{sT0}, s{sT0}, {FH}
            v_lshlrev_b32 v13, 2, v{vL}
            s_mov_b32 s{sT1}, {FT}
            s_mov_b32 s{sT2}, {FT + 256}""")
            poll_multi(k, [(12, sT0), (13, sT1), (13, sT2)], 8, sWS, sTAG, sT3)
            stamp(k, 10)
            del q[:]
            for s in range(DEPTH):
                f_loads(k, s)
                q.extend([("f", s)] * 6)
        for _ in range(STEPS[c]):
            wait_for(("f", step))
            f_mf(k, step % DEPTH, step == 0)
            if step + DEPTH < 27:
                f_loads(k, step % DEPTH)
                q.extend([("f", step + DEPTH)] * 6)
            step += 1
        if c == 7:
            break
        if ("dma", c + 1) in q:
            wait_for(("dma", c + 1))
        k("s_barrier")
        if c + 2 <= 7:
            dma(k, c + 2)
            q.extend([("dma", c + 2)] * 6)
    stamp(k, 11)
    k("s_barrier")
    k("s_setprio 3")
    part_addr(k, 12)
    for n in range(4):
        for g in range(4):
            k(f"ds_write_b128 v12, {vr(ACC+16*n+4*g,4)} offset:{(8*n+2*g)*QS}")
    wot_addr(k, 4096)
    for u in range(10):
        if u == 8:
            k(f"s_mov_b32 s{sB}, s{sA}")
        k(f"buffer_load_dwordx4 {vr(FR+4*u,4)}, v{vLA}, s[{sWS}:{sWS+3}], s{sB} offen sc1")
        k(f"s_add_u32 s{sB}, s{sB}, 20480")
    final_addr(k)
    k(f"v_mov_b32 v{vFA+2}, v12")
    k(f"""v_and_b32 v12, 7, v{vL}
    v_lshlrev_b32 v12, 2, v12
    s_lshl_b32 s{sT0}, s{sTT}, 2
    s_add_u32 s{sT0}, s{sT0}, s{sLW}
    s_lshl_b32 s{sT0}, s{sT0}, 5
    s_add_u32 s{sT0}, s{sT0}, {FO}
    s_mul_i32 s{sA}, s{sTT}, 40960
    s_add_u32 s{sA}, s{sA}, {OP}
    s_lshl_b32 s{sT2}, s{sLW}, 13
    s_lshl_b32 s{sT3}, s{sLW}, 11
    s_add_u32 s{sT3}, s{sT3}, 32768
    s_waitcnt lgkmcnt(0)
    s_barrier""")
    poll(k, 12, 8, sWS, sT0, sTAG, sT1)
    stamp(k, 12)
    for (sb, n) in ((sT2, 4), (None, 4), (sT3, 2)):
        if sb is None:
            k(f"s_add_u32 s{sT2}, s{sT2}, 4096")
            sb = sT2
        k(f"s_mov_b32 m0, s{sb}\ns_add_u32 s{sT0}, s{sA}, s{sb}")
        for u in range(n):
            k(f"buffer_load_dwordx4 v{vLA}, s[{sWS}:{sWS+3}], s{sT0} offen offset:{1024*u} sc1 lds")
    proj(k, [ACC + 64], lambda u, n: FR + 4 * u, FR + 40, 32 * QS)
    final(k, lend)


def attn_waves(k, lend):
    lloop = k.newlabel("loop")
    lfin = k.newlabel("fin")
    lslow = k.newlabel("slow")
    bfr = lambda u, n: (96 + 8 * u + 4 * n) if u < 8 else (48 + 8 * (u - 8) + 4 * n)
    k(f"""s_mov_b32 s{sLO}, -1
    s_mov_b32 s{sLO+1}, 0
    s_mov_b32 s{sHI}, 0
    s_mov_b32 s{sHI+1}, -1
    s_mov_b32 s{sVM}, 0xfffff
    s_mov_b32 s{sVM+1}, 0xfffff""")
    stamp(k, 7)
    k("s_barrier")
    final_addr(k)
    k(f"""v_and_b32 v2, 31, v{vL}
    v_lshlrev_b32 v{vT}, 3, v2
    v_lshl_add_u32 v{vCUR}, v3, 9, v{vT}
    v_add_u32 v{vCUR+1}, 1024, v{vT}
    v_min_u32 v2, 20, v2
    v_lshlrev_b32 v2, 4, v2
    v_mul_u32_u24 v{vT+2}, 336, v3
    v_add3_u32 v{vCUR+2}, v2, v{vT+2}, 64
    v_add_u32 v{vCUR+2}, {1280-64}, v{vCUR+2}
    v_lshrrev_b32 v2, 2, v0
    v_mul_u32_u24 v2, {TS}, v2
    v_and_b32 v{vT+2}, 3, v0
    v_mul_u32_u24 v{vT+2}, 336, v{vT+2}
    v_add_u32 v2, v2, v{vT+2}
    v_mov_b32 v{vT}, 0x3f803f80
    v_mov_b32 v{vT+1}, 0x3f803f80
    v_cmp_gt_u32 vcc, {8*NSLOT*4}, v0
    s_and_saveexec_b64 s[6:7], vcc
    ds_write_b64 v2, {vr(vT,2)} offset:1600
    ds_write_b64 v2, {vr(vT,2)} offset:1608
    s_mov_b64 exec, -1""")
    for i in range(3):
        k(f"v_add_u32 v{vNXT+i}, {CH}, v{vCUR+i}")
    for r in list(range(vO, vO + 16)) + list(range(vP[1], vP[1] + 4)) + list(range(vV[1], vV[1] + 4)):
        k(f"v_mov_b32 v{r}, 0")
    k(f"""s_mul_i32 s{sT0}, s{sQT}, 40960
    s_mul_i32 s{sT1}, s{sH}, 1280
    s_add_u32 s{sT0}, s{sT0}, s{sT1}
    s_add_u32 s{sT0}, s{sT0}, {QP}
    s_barrier""")
    stamp(k, 8)
    k(f"""buffer_load_dwordx2 {vr(vQM,2)}, v{vCUR}, s[{sWS}:{sWS+3}], s{sT0} offen sc1
    buffer_load_dwordx2 {vr(vQM+2,2)}, v{vCUR}, s[{sWS}:{sWS+3}], s{sT0} offen offset:256 sc1
    buffer_load_dwordx2 {vr(vQT,2)}, v{vCUR+1}, s[{sWS}:{sWS+3}], s{sT0} offen sc1
    s_mov_b32 s{sC}, 0
    s_mov_b32 s{sNX}, {CH}""")
    k(f"""s_waitcnt vmcnt(0) lgkmcnt(0)
    s_mov_b64 exec, s[{sHI}:{sHI+1}]
    v_mov_b32 v{vQT}, 0
    v_mov_b32 v{vQT+1}, 0
    s_mov_b64 exec, -1
    s_barrier""")
    stamp(k, 9)
    lnh = k.newlabel("noh")
    k(f"""s_cmp_eq_u32 s{sPEND2}, 0
    s_cbranch_scc1 {lnh}
    v_lshlrev_b32 v2, 4, v{vL}
    s_add_u32 s{sT0}, s{sPEND2}, {108*1024}""")
    for b in range(2):
        for j in range(4):
            k(f"buffer_store_dwordx4 {vr(HREG+16*b+4*j,4)}, v2, s[{sWS}:{sWS+3}], s{sPEND2 if b == 0 else sT0} offen offset:{j*1024} sc1")
    k(f"{lnh}:")
    k(rd_kt(0))
    k(rd_km(0))
    k("s_waitcnt lgkmcnt(0)")
    k(m_tail(vS[0]))
    k(m_main(vS[0]))
    k(rd_kt(1))
    k(rd_km(1))
    k(rd_v(0, 0))
    k("s_nop 7")
    k(".p2align 3")
    k(f"{lloop}:")
    for tt in range(8):
        tile(k, tt)
    lpf = k.newlabel("nopf")
    lph = k.newlabel("noph")
    k(f"s_cmp_lg_u32 s{sC}, 0\ns_cbranch_scc1 {lph}")
    publish(k, vT, sWS, sPEND, sTAG)
    k(f"{lph}:")
    k(f"""s_cmp_lg_u32 s{sC}, 2
    s_cbranch_scc1 {lpf}
    s_lshr_b32 s{sT0}, s{sWV}, 2
    s_lshl_b32 s{sT0}, s{sT0}, 11
    v_lshlrev_b32 v2, 4, v{vL}""")
    wot_addr(k, f"s{sT0}")
    for u in range(8):
        for n in range(2):
            k(f"buffer_load_dwordx4 {vr(bfr(u, n),4)}, v2, s[{sWS}:{sWS+3}], s{sB} offen offset:{1024*n} sc1")
        k(f"s_add_u32 s{sB}, s{sB}, 20480")
    k(f"{lpf}:")
    k(f"""s_add_u32 s{sNX}, s{sNX}, {CH}
    s_cmp_ge_u32 s{sNX}, {NSLOT*CH}
    s_cselect_b32 s{sT0}, {NSLOT*CH}, 0
    s_sub_u32 s{sT1}, {CH}, s{sT0}
    s_sub_u32 s{sNX}, s{sNX}, s{sT0}""")
    for i in range(3):
        k(f"v_mov_b32 v{vCUR+i}, v{vNXT+i}")
    for i in range(3):
        k(f"v_add_u32 v{vNXT+i}, s{sT1}, v{vNXT+i}")
    k(f"""s_add_u32 s{sC}, s{sC}, 1
    s_cmp_lt_u32 s{sC}, 8
    s_cbranch_scc1 {lloop}
    s_waitcnt lgkmcnt(0)""")
    k(m_pv(1))
    k("s_barrier")
    stamp(k, 10)
    k(f"""v_mov_b32 v{vT}, v{vO+8}
    v_mov_b32 v{vT+1}, v{vO+8}
    v_permlane32_swap_b32 v{vT}, v{vT+1}
    v_mov_b32 v{vT+2}, 0""")
    for r in range(12):
        k(f"v_fma_f32 v{vT+2}, v{vO+r}, 0, v{vT+2}")
    k(f"""s_mov_b32 s{sT0}, {f32(2.0**-64)}
    s_mov_b32 s{sT1}, {f32(2.0**64)}
    v_cmp_le_f32 s[6:7], s{sT0}, v{vT+1}
    v_cmp_ge_f32 vcc, s{sT1}, v{vT+1}
    s_and_b64 s[6:7], s[6:7], vcc
    v_cmp_eq_f32 vcc, 0, v{vT+2}
    s_and_b64 s[6:7], s[6:7], vcc
    s_cmp_eq_u64 s[6:7], -1
    s_cbranch_scc0 {lslow}
    {lfin}:
    v_mov_b32 v{vT}, v{vO+8}
    v_mov_b32 v{vT+1}, v{vO+8}
    v_permlane32_swap_b32 v{vT}, v{vT+1}
    v_rcp_f32 v{vT+1}, v{vT+1}
    s_mul_i32 s{sT0}, s{sQT}, 40960
    s_add_u32 s{sT0}, s{sT0}, {OP}
    s_lshl_b32 s{sT1}, s{sH}, 10
    s_add_u32 s{sT1}, s{sT1}, s{sT0}
    s_lshr_b32 s{sT2}, s{sH}, 2
    s_add_u32 s{sT2}, s{sT2}, 32
    s_lshl_b32 s{sT2}, s{sT2}, 10
    s_add_u32 s{sT0}, s{sT0}, s{sT2}
    s_and_b32 s{sT2}, s{sH}, 1
    s_lshl_b32 s{sT2}, s{sT2}, 9
    s_add_u32 s{sT0}, s{sT0}, s{sT2}
    s_bfe_u32 s{sT2}, s{sH}, 0x10001
    s_lshl_b32 s{sT2}, s{sT2}, 3
    s_add_u32 s{sT0}, s{sT0}, s{sT2}""")
    for r in range(12):
        k(f"v_mul_f32 v{vO+r}, v{vO+r}, v{vT+1}")
    for i in range(6):
        k(f"v_cvt_pk_bf16_f32 v{vS[0]+i}, v{vO+2*i}, v{vO+2*i+1}")
    k(f"""v_lshlrev_b32 v2, 4, v{vL}
    buffer_store_dwordx4 {vr(vS[0],4)}, v2, s[{sWS}:{sWS+3}], s{sT1} offen sc1
    s_mov_b64 exec, s[{sLO}:{sLO+1}]
    buffer_store_dwordx2 {vr(vS[0]+4,2)}, v2, s[{sWS}:{sWS+3}], s{sT0} offen sc1
    s_mov_b64 exec, -1
    s_lshl_b32 s{sT0}, s{sQT}, 5
    s_add_u32 s{sT0}, s{sT0}, s{sH}
    s_lshl_b32 s{sT0}, s{sT0}, 2
    s_add_u32 s{sC}, s{sT0}, {FO}""")
    stamp(k, 11)
    publish(k, vT, sWS, sC, sTAG)
    stamp(k, 12)
    for u in (8, 9):
        for n in range(2):
            k(f"buffer_load_dwordx4 {vr(bfr(u, n),4)}, v2, s[{sWS}:{sWS+3}], s{sA} offen offset:{1024*n} sc1")
        k(f"s_add_u32 s{sA}, s{sA}, 20480")
    part_addr(k, vFA + 2)
    k(f"""s_lshr_b32 s{sT0}, s{sWV}, 2
    s_mul_i32 s{sT0}, s{sT0}, {16*QS}
    v_add_u32 v{vFA+2}, s{sT0}, v{vFA+2}""")
    for n in range(2):
        for g in range(4):
            k(f"ds_read_b128 {vr(16+16*n+4*g,4)}, v{vFA+2} offset:{(8*n+2*g)*QS}")
    proj(k, [16, 32], bfr, 4, 0)
    final(k, lend)
    ll = k.newlabel("slowloop")
    s = vS[0]
    vM, vA = vT + 2, vT + 3
    k(f"""{lslow}:
    s_mul_i32 s{sT1}, s{sH}, 1280
    s_add_u32 s{sT1}, s{sT1}, {KP}
    s_mul_i32 s{sT2}, s{sH}, 320
    s_add_u32 s{sT2}, s{sT2}, {VP}
    v_and_b32 v2, 31, v{vL}
    v_lshrrev_b32 v3, 5, v{vL}
    v_lshlrev_b32 v{vCUR+1}, 3, v2
    v_lshl_add_u32 v{vCUR}, v3, 9, v{vCUR+1}
    v_mul_u32_u24 v3, 10240, v3
    v_lshl_add_u32 v{vCUR+2}, v2, 4, v3
    v_add_u32 v{vNXT}, 20480, v{vCUR+2}
    v_mov_b32 v{vM}, 0xff800000
    s_mov_b32 s{sC}, 0""")
    for r in range(16):
        k(f"v_mov_b32 v{vO+r}, 0")
    for r in range(8):
        k(f"v_mov_b32 v{vV[0]+r}, 0x3f803f80")
    k(f"""{ll}:
    buffer_load_dwordx2 {vr(vKM,2)}, v{vCUR}, s[{sWS}:{sWS+3}], s{sT1} offen sc1
    buffer_load_dwordx2 {vr(vKM+2,2)}, v{vCUR}, s[{sWS}:{sWS+3}], s{sT1} offen offset:256 sc1
    buffer_load_dwordx2 {vr(vKT,2)}, v{vCUR+1}, s[{sWS}:{sWS+3}], s{sT1} offen offset:1024 sc1
    s_mov_b64 exec, s[{sVM}:{sVM+1}]
    buffer_load_dwordx4 {vr(vV[0],4)}, v{vCUR+2}, s[{sWS}:{sWS+3}], s{sT2} offen sc1
    buffer_load_dwordx4 {vr(vV[1],4)}, v{vNXT}, s[{sWS}:{sWS+3}], s{sT2} offen sc1
    s_mov_b64 exec, -1
    s_waitcnt vmcnt(0)""")
    k(m_tail(s))
    k(m_main(s))
    k(f"v_max3_f32 v{vT}, v{s}, v{s+1}, v{vM}")
    for r in range(2, 16, 2):
        k(f"v_max3_f32 v{vT}, v{s+r}, v{s+r+1}, v{vT}")
    k(f"""v_mov_b32 v{vT+1}, v{vT}
    v_permlane32_swap_b32 v{vT}, v{vT+1}
    v_max_f32 v{vT}, v{vT}, v{vT+1}
    v_sub_f32 v{vA}, v{vM}, v{vT}
    v_exp_f32 v{vA}, v{vA}
    v_mov_b32 v{vM}, v{vT}""")
    for r in range(16):
        k(f"v_mul_f32 v{vO+r}, v{vO+r}, v{vA}")
    for r in range(16):
        k(f"v_sub_f32 v{s+r}, v{s+r}, v{vM}")
    for r in range(16):
        k(f"v_exp_f32 v{s+r}, v{s+r}")
    for i in range(8):
        k(f"v_cvt_pk_bf16_f32 v{vP[i//4]+i%4}, v{s+2*i}, v{s+2*i+1}")
    k(m_pv(0))
    k(m_pv(1))
    k(f"""s_add_u32 s{sT1}, s{sT1}, 40960
    s_add_u32 s{sT2}, s{sT2}, 40960
    s_add_u32 s{sC}, s{sC}, 1
    s_cmp_lt_u32 s{sC}, 64
    s_cbranch_scc1 {ll}
    s_branch {lfin}""")


def phase_bc(k, lend):
    lffn = k.newlabel("ffn")
    ids(k)
    k(f"s_cmp_ge_u32 s{sWV}, 8\ns_cbranch_scc1 {lffn}")
    attn_waves(k, lend)
    k(f"{lffn}:")
    ffn_waves(k, lend)
```

```python
import sys, os
sys.path.insert(0, os.path.dirname(os.path.abspath(__file__)))
from common import *
import pa, pb

HEAD = open(os.path.join(os.path.dirname(os.path.abspath(__file__)), "head.txt")).read()


def gen_fused():
    name = NAME + "_kernel"
    k = Kernel("f")
    lx = k.newlabel("exit")
    done = k.newlabel("adone")
    lend = k.newlabel("end")
    pa.entry(k, lx)
    pa.phase_a(k, done)
    k(f"{done}:")
    pb.phase_bc(k, lend)
    k(f"{lend}:")
    if STAMPS:
        k("s_waitcnt vmcnt(0)")
    stamp_flush(k, 0, 16, pa.sWS, pa.sWV)
    k(f"{lx}:\ns_endpgm")
    return name, k, 168, max(pa.PA_LDS, pb.PB_LDS)


if __name__ == "__main__":
    out = sys.argv[1] if len(sys.argv) > 1 else f"cdna_kernels/{NAME}.s"
    name, k, vgpr, lds = gen_fused()
    s = HEAD
    s += f"; @launch grid=(256,1,1) block=(768,1,1) lds={lds}\n"
    s += '.amdgcn_target "amdgcn-amd-amdhsa--gfx950"\n'
    s += header(name) + k.finish("-v" in sys.argv) + "\n" + descriptor(name, vgpr)
    print(f"{len(k.lines)} lines, {k.inserted} nops inserted, vgpr {vgpr} lds {lds}")
    open(out, "w").write(s)
```
